```python
import torch

def _softmax(x, axis=-1):
    return torch.softmax(x, dim=axis)
def _gelu(x):
    return torch.nn.functional.gelu(x, approximate="tanh")
def _silu(x):
    return torch.nn.functional.silu(x)
def _sigmoid(x):
    return torch.sigmoid(x)
def _layernorm(x, axis=-1, eps=1e-5):
    m = x.mean(dim=axis, keepdim=True)
    v = x.var(dim=axis, keepdim=True, unbiased=False)
    return (x - m) / torch.sqrt(v + eps)
def _scatter_add(tgt, idx, src, axis=0):
    return tgt.clone().index_add_(axis, idx, src)
def _segment_sum(src, seg, n):
    out = torch.zeros((n,) + src.shape[1:], dtype=src.dtype)
    return out.index_add_(0, seg, src)
def _pad(x, pw):
    flat = tuple(v for pair in reversed(pw) for v in pair)
    return torch.nn.functional.pad(x, flat)

kernel_name = 'gated_mix__ssm_conv_h3__sliding_block__prompt'

def setup_inputs():

    _w = (lambda a: (lambda t: t.to(torch.bfloat16) if t.is_floating_point() else t)(torch.as_tensor(a)))
    def _A_setup():
        B, S, D = 1, 2048, 512
        ks = 4
        return {
            "q": _w((lambda *s: torch.randn(*s, dtype=torch.bfloat16) * 0.05)(B, S, D)),
            "k": _w((lambda *s: torch.randn(*s, dtype=torch.bfloat16) * 0.8)(B, S, D)),
            "v": _w((lambda *s: torch.randn(*s, dtype=torch.bfloat16) * 0.8)(B, S, D)),
            "shift_k": _w((lambda *s: torch.randn(*s, dtype=torch.bfloat16) * 0.8)(D, ks) * 0.5),
            "ssm_k": _w((lambda *s: torch.randn(*s, dtype=torch.bfloat16) * 1.6)(D, S) * (1.0 / S ** 0.5)),
            "ssm_D": _w((lambda *s: torch.randn(*s, dtype=torch.bfloat16) * 0.8)(D)),
        }
    _A_in = _A_setup()

    def _B_setup():
        B, S, D = 1, 2048, 512
        return {
            "x": _w((lambda *s: torch.randn(*s, dtype=torch.bfloat16) * 0.05)(B, S, D)),
            "wqkv": _w((lambda *s: torch.randn(*s, dtype=torch.bfloat16) * 0.8)(D, 3 * D)),
            "wo": _w((lambda *s: torch.randn(*s, dtype=torch.bfloat16) * 0.05)(D, D)),
        }
    _B_in = _B_setup()

    return {
        "A_q": _A_in["q"],
        "A_k": _A_in["k"],
        "A_v": _A_in["v"],
        "A_shift_k": _A_in["shift_k"],
        "A_ssm_k": _A_in["ssm_k"],
        "A_ssm_D": _A_in["ssm_D"],
        "B_x": _B_in["x"],
        "B_wqkv": _B_in["wqkv"],
        "B_wo": _B_in["wo"],
        "gate_w": _w((lambda *s: torch.randn(*s, dtype=torch.bfloat16) * 0.05)(512) * 16.0),
    }

def reference(A_q, A_k, A_v, A_shift_k, A_ssm_k, A_ssm_D, B_x, B_wqkv, B_wo, gate_w):
    def _A_ref(q, k, v, shift_k, ssm_k, ssm_D):
        B, S, D = q.shape
        ks = shift_k.shape[-1]
        k_pad = _pad(k, ((0, 0), (ks - 1, 0), (0, 0)))
        k_shift = torch.zeros_like(k)
        for t in range(ks):
            k_shift = k_shift + k_pad[:, t:t + S, :] * shift_k[:, ks - 1 - t][None, None, :]
        kv = k_shift * v
        L = 2 * S
        kv_pad = _pad(kv, ((0, 0), (0, S), (0, 0)))
        kf_pad = _pad(ssm_k, ((0, 0), (0, S)))
        kv_f = (lambda x, axes=(-2,-1): torch.fft.rfft2(x.float(), dim=axes))(kv_pad[:, None, :, :], axes=(1, 2))
        kf_f = (lambda x, axes=(-2,-1): torch.fft.rfft2(x.float(), dim=axes))(kf_pad[:, None, :], axes=(1, 2))
        kf_f = (lambda x, *d: x.permute(*d))(kf_f, 1, 2, 0)
        y_f = kv_f * kf_f[None, :, :, :]
        y = (lambda x, s, axes=(-2,-1): torch.fft.irfft2(x, s=s, dim=axes).to(torch.bfloat16))(y_f, (1, L), axes=(1, 2))[:, 0, :S, :]
        y = y + kv * ssm_D[None, None, :]
        return q * y

    def _B_ref(x, wqkv, wo):
        B, S, D = x.shape
        H = 32; Dh = D // H; W = 256
        qkv = (lambda x, *d: x.permute(*d))((x @ wqkv).reshape(B, S, 3, H, Dh), 2, 0, 3, 1, 4)
        q, k, v = qkv[0], qkv[1], qkv[2]
        scores = torch.einsum("bhqd,bhkd->bhqk", q, k) * (Dh ** -0.5)
        idx = torch.arange(S)
        mask = (idx[:, None] - idx[None, :] >= 0) & (idx[:, None] - idx[None, :] < W)
        scores = torch.where(mask[None, None], scores, -1e9)
        p = _softmax(scores, axis=-1)
        o = torch.einsum("bhqk,bhkd->bhqd", p, v)
        return (lambda x, *d: x.permute(*d))(o, 0, 2, 1, 3).reshape(B, S, D) @ wo

    x = A_q
    g = _sigmoid((x * gate_w).sum(-1, keepdims=True))
    a = _A_ref(x, A_k, A_v, A_shift_k, A_ssm_k, A_ssm_D)
    b = _B_ref(x, B_wqkv, B_wo)
    return g * a + (1 - g) * b
```

```python
_G = [0]
class Asm:
    def __init__(self):
        self.lines = []
    def __call__(self, s):
        for ln in s.strip("\n").split("\n"):
            self.lines.append("    " + ln.strip())
    def label(self, name):
        self.lines.append(name + ":")
    def raw(self, s):
        self.lines.append(s)
    def newlabel(self, base="L"):
        _G[0] += 1
        return f"{base}_{_G[0]}"
    def text(self):
        return "\n".join(self.lines) + "\n"

def vr(a, n=None):
    if n is None or n == 1:
        return f"v{a}"
    return f"v[{a}:{a+n-1}]"
def sr(a, n=None):
    if n is None or n == 1:
        return f"s{a}"
    return f"s[{a}:{a+n-1}]"

def kernel_header(name):
    return f""".globl {name}
.p2align 8
.type {name},@function
{name}:
"""
def kernel_desc(name, vgpr, sgpr=100):
    acc = (vgpr + 3) // 4 * 4
    return f""".p2align 6
.amdhsa_kernel {name}
  .amdhsa_next_free_vgpr {vgpr}
  .amdhsa_next_free_sgpr {sgpr}
  .amdhsa_accum_offset {acc}
  .amdhsa_group_segment_fixed_size 0
  .amdhsa_kernarg_size 104
  .amdhsa_user_sgpr_count 2
  .amdhsa_user_sgpr_kernarg_segment_ptr 1
  .amdhsa_system_sgpr_workgroup_id_x 1
.end_amdhsa_kernel
"""
```

```python
from asmlib import *
from gemm import WS_Q, WS_K, WS_V, WS_O, MB

def attn_body(a):
    sWS = 12
    vC, vG, vKo, vVo, vT = 2, 3, 4, 5, 6
    vQ = 10
    vK = 12
    vV = 48
    vS = 84
    vO = 152
    vEnd = 156
    a(f"""
    s_load_dwordx2 s[8:9], s[0:1], 96
    v_and_b32 v1, 63, v0
    v_lshrrev_b32 {vr(vT)}, 6, v0
    s_nop 0
    v_readfirstlane_b32 s26, {vr(vT)}
    s_lshr_b32 s24, s2, 5
    s_and_b32 s25, s2, 31
    s_lshl_b32 s25, s25, 2
    s_add_u32 s25, s25, s26
    s_lshl_b32 s25, s25, 4
    s_waitcnt lgkmcnt(0)
    s_mov_b32 s{sWS}, s8
    s_mov_b32 s{sWS+1}, s9
    s_mov_b32 s{sWS+2}, {16*MB}
    s_mov_b32 s{sWS+3}, 0x00020000
    v_and_b32 {vr(vC)}, 15, v1
    v_lshrrev_b32 {vr(vG)}, 4, v1
    v_lshlrev_b32 {vr(vKo)}, 5, {vr(vC)}
    v_lshl_add_u32 {vr(vKo)}, {vr(vG)}, 3, {vr(vKo)}
    v_lshlrev_b32 {vr(vVo)}, 12, {vr(vC)}
    v_lshl_add_u32 {vr(vVo)}, {vr(vG)}, 3, {vr(vVo)}
    ; s27 = (h*2048+q0)*32
    s_lshl_b32 s27, s24, 11
    s_add_u32 s27, s27, s25
    s_lshl_b32 s27, s27, 5
    buffer_load_dwordx2 {vr(vQ,2)}, {vr(vKo)}, {sr(sWS,4)}, s27 offen
    s_sub_i32 s28, 256, s25
    s_max_i32 s28, s28, 0
    s_lshr_b32 s28, s28, 4
    s_add_u32 s29, s27, {WS_K - 256*32}
    s_lshl_b32 s30, s24, 16
    s_lshl_b32 s31, s25, 1
    s_add_u32 s30, s30, s31
    s_add_u32 s30, s30, {WS_V - 512}
    """)
    for i in range(68):
        a(f"v_mov_b32 {vr(vS+i)}, 0xce6e6b28")
    for i in range(36):
        a(f"v_mov_b32 {vr(vV+i)}, 0")
    for t in range(17):
        L = a.newlabel("Lsk")
        a(f"s_cmp_gt_u32 s28, {t}\ns_cbranch_scc1 {L}")
        a(f"s_add_u32 s32, s29, {t*512}\ns_add_u32 s33, s30, {t*32}")
        a(f"buffer_load_dwordx2 {vr(vK+2*t,2)}, {vr(vKo)}, {sr(sWS,4)}, s32 offen")
        a(f"buffer_load_dwordx2 {vr(vV+2*t,2)}, {vr(vVo)}, {sr(sWS,4)}, s33 offen")
        a.label(L)
    a("s_waitcnt vmcnt(0)")
    for t in range(17):
        L = a.newlabel("Lsm")
        a(f"s_cmp_gt_u32 s28, {t}\ns_cbranch_scc1 {L}")
        a(f"v_mov_b32 {vr(vS+4*t)}, 0\nv_mov_b32 {vr(vS+4*t+1)}, 0\nv_mov_b32 {vr(vS+4*t+2)}, 0\nv_mov_b32 {vr(vS+4*t+3)}, 0\ns_nop 1")
        a(f"v_mfma_f32_16x16x16_bf16 {vr(vS+4*t,4)}, {vr(vK+2*t,2)}, {vr(vQ,2)}, {vr(vS+4*t,4)}")
        a.label(L)
    a("s_nop 7\ns_nop 1")
    a(f"v_lshlrev_b32 {vr(vT)}, 2, {vr(vG)}\nv_mov_b32 {vr(vT+1)}, 0xce6e6b28")
    for i in range(4):
        a(f"""
        v_add_u32 {vr(vT+2)}, {i}, {vr(vT)}
        v_cmp_lt_u32 vcc, {vr(vC)}, {vr(vT+2)}
        s_nop 1
        v_cndmask_b32 {vr(vS+i)}, {vr(vT+1)}, {vr(vS+i)}, vcc
        v_cndmask_b32 {vr(vS+64+i)}, {vr(vS+64+i)}, {vr(vT+1)}, vcc
        """)
    a(f"v_max3_f32 {vr(vT)}, {vr(vS)}, {vr(vS+1)}, {vr(vS+2)}")
    a(f"v_max_f32 {vr(vT)}, {vr(vT)}, {vr(vS+3)}")
    for i in range(4, 68, 2):
        a(f"v_max3_f32 {vr(vT)}, {vr(vT)}, {vr(vS+i)}, {vr(vS+i+1)}")
    def xreduce(op):
        a(f"""
        v_mov_b32 {vr(vT+1)}, {vr(vT)}
        s_nop 1
        v_permlane32_swap_b32 {vr(vT)}, {vr(vT+1)}
        {op} {vr(vT)}, {vr(vT)}, {vr(vT+1)}
        v_mov_b32 {vr(vT+1)}, {vr(vT)}
        s_nop 1
        v_permlane16_swap_b32 {vr(vT)}, {vr(vT+1)}
        {op} {vr(vT)}, {vr(vT)}, {vr(vT+1)}
        """)
    xreduce("v_max_f32")
    a(f"""
    s_mov_b32 s34, 0x3eb8aa3b
    v_mul_f32 {vr(vT+2)}, s34, {vr(vT)}
    v_sub_f32 {vr(vT+2)}, 0, {vr(vT+2)}
    v_mov_b32 {vr(vT+3)}, 0
    """)
    for i in range(68):
        a(f"v_fma_f32 {vr(vS+i)}, {vr(vS+i)}, s34, {vr(vT+2)}")
        a(f"v_exp_f32 {vr(vS+i)}, {vr(vS+i)}")
    a("s_nop 0")
    for i in range(68):
        a(f"v_add_f32 {vr(vT+3)}, {vr(vT+3)}, {vr(vS+i)}")
    for t in range(17):
        a(f"v_cvt_pk_bf16_f32 {vr(vK+2*t)}, {vr(vS+4*t)}, {vr(vS+4*t+1)}")
        a(f"v_cvt_pk_bf16_f32 {vr(vK+2*t+1)}, {vr(vS+4*t+2)}, {vr(vS+4*t+3)}")
    a(f"v_mov_b32 {vr(vK+34)}, 0\nv_mov_b32 {vr(vK+35)}, 0")
    a(f"v_mov_b32 {vr(vT)}, {vr(vT+3)}")
    xreduce("v_add_f32")
    a(f"v_rcp_f32 {vr(vT)}, {vr(vT)}")
    for i in range(4):
        a(f"v_mov_b32 {vr(vO+i)}, 0")
    a("s_nop 1")
    for j in range(9):
        a(f"v_mfma_f32_16x16x32_bf16 {vr(vO,4)}, {vr(vV+4*j,4)}, {vr(vK+4*j,4)}, {vr(vO,4)}")
    a("s_nop 7\ns_nop 1")
    for i in range(4):
        a(f"v_mul_f32 {vr(vO+i)}, {vr(vO+i)}, {vr(vT)}")
    a(f"""
    v_cvt_pk_bf16_f32 {vr(vO)}, {vr(vO)}, {vr(vO+1)}
    v_cvt_pk_bf16_f32 {vr(vO+1)}, {vr(vO+2)}, {vr(vO+3)}
    v_lshlrev_b32 {vr(vKo)}, 10, {vr(vC)}
    v_lshl_add_u32 {vr(vKo)}, {vr(vG)}, 3, {vr(vKo)}
    s_lshl_b32 s32, s25, 10
    s_lshl_b32 s33, s24, 5
    s_add_u32 s32, s32, s33
    s_add_u32 s32, s32, {WS_O}
    buffer_store_dwordx2 {vr(vO,2)}, {vr(vKo)}, {sr(sWS,4)}, s32 offen
    s_waitcnt vmcnt(0)
    """)
    return vEnd, 0
```

```python
from asmlib import *
from gemm import WS_Y2T, WS_G, MB

KVZ_BLK = 127
KVSZ = 80*KVZ_BLK
HRSZ = 4176
CH = KVSZ + HRSZ
CONV_LDS = 4*CH

def conv_body(a):
    sK, sV, sH, sWS = 12, 16, 20, 24
    vT = 2
    vKr = 10
    vVr = 32
    vKf = 48
    vVf = 92
    vP = 124
    vA = 10
    vB1 = 26
    vB0 = 42
    vAcc = 64
    vHr = 96
    vEnd = 140
    a(f"""
    s_load_dwordx2 s[4:5], s[0:1], 8
    s_load_dwordx2 s[6:7], s[0:1], 16
    s_load_dwordx2 s[8:9], s[0:1], 24
    s_load_dwordx2 s[10:11], s[0:1], 32
    s_load_dwordx2 s[58:59], s[0:1], 40
    s_load_dwordx2 s[60:61], s[0:1], 96
    v_and_b32 v1, 63, v0
    v_lshrrev_b32 {vr(vT)}, 6, v0
    s_nop 0
    v_readfirstlane_b32 s62, {vr(vT)}
    s_lshl_b32 s63, s2, 2
    s_waitcnt lgkmcnt(0)
    s_lshl_b32 s64, s63, 3
    s_add_u32 s8, s8, s64
    s_addc_u32 s9, s9, 0
    s_load_dwordx8 s[28:35], s[8:9], 0
    s_lshl_b32 s64, s63, 1
    s_add_u32 s58, s58, s64
    s_addc_u32 s59, s59, 0
    s_load_dwordx2 s[52:53], s[58:59], 0
    s_mov_b32 s{sK}, s4
    s_mov_b32 s{sK+1}, s5
    s_mov_b32 s{sK+2}, {2048*1024}
    s_mov_b32 s{sK+3}, 0x00020000
    s_mov_b32 s{sV}, s6
    s_mov_b32 s{sV+1}, s7
    s_mov_b32 s{sV+2}, {2048*1024}
    s_mov_b32 s{sV+3}, 0x00020000
    s_mov_b32 s{sH}, s10
    s_mov_b32 s{sH+1}, s11
    s_mov_b32 s{sH+2}, {512*4096}
    s_mov_b32 s{sH+3}, 0x00020000
    s_mov_b32 s{sWS}, s60
    s_mov_b32 s{sWS+1}, s61
    s_mov_b32 s{sWS+2}, {16*MB}
    s_mov_b32 s{sWS+3}, 0x00020000
    ; k/v loads
    v_lshlrev_b32 {vr(vT)}, 13, v0
    s_lshl_b32 s64, s63, 1
    v_add_u32 {vr(vT)}, s64, {vr(vT)}
    v_add_u32 {vr(vT+1)}, 4096, {vr(vT)}
    v_subrev_u32 {vr(vT+2)}, 3072, {vr(vT)}
    """)
    for i in range(3):
        a(f"buffer_load_dwordx2 {vr(vKr+2*i,2)}, {vr(vT+2)}, {sr(sK,4)}, 0 offen offset:{1024*i}")
    for i in range(8):
        a(f"buffer_load_dwordx2 {vr(vKr+6+2*i,2)}, {vr(vT+(i>>2))}, {sr(sK,4)}, 0 offen offset:{1024*(i&3)}")
    for i in range(8):
        a(f"buffer_load_dwordx2 {vr(vVr+2*i,2)}, {vr(vT+(i>>2))}, {sr(sV,4)}, 0 offen offset:{1024*(i&3)}")
    a(f"""
    s_add_u32 s64, s63, s62
    s_lshl_b32 s65, s64, 12
    v_lshlrev_b32 {vr(vT+3)}, 6, v1
    """)
    for i in range(4):
        a(f"buffer_load_dwordx4 {vr(vHr+4*i,4)}, {vr(vT+3)}, {sr(sH,4)}, s65 offen offset:{16*i}")
    a(f"""
    s_mul_i32 s66, s62, {CH}
    v_mov_b32 {vr(vP)}, 0
    v_mov_b32 {vr(vP+1)}, 0
    v_mov_b32 {vr(vP+2)}, 0
    v_mov_b32 {vr(vP+3)}, 0
    v_mul_u32_u24 {vr(vT+4)}, 80, v1
    v_add_u32 {vr(vT+4)}, s66, {vr(vT+4)}
    """)
    for i in range(5):
        a(f"ds_write_b128 {vr(vT+4)}, {vr(vP,4)} offset:{16*i}")
    a(f"""
    v_and_b32 {vr(vT+5)}, 3, v1
    v_lshlrev_b32 {vr(vT+5)}, 4, {vr(vT+5)}
    v_add_u32 {vr(vT+5)}, s66, {vr(vT+5)}
    ds_write_b128 {vr(vT+5)}, {vr(vP,4)} offset:{KVSZ+4096}
    s_waitcnt lgkmcnt(0)
    s_barrier
    """)
    for c in range(4):
        a(f"""
        s_lshl_b32 s{36+4*c}, s{28+2*c}, 16
        s_and_b32 s{37+4*c}, s{28+2*c}, 0xffff0000
        s_lshl_b32 s{38+4*c}, s{29+2*c}, 16
        s_and_b32 s{39+4*c}, s{29+2*c}, 0xffff0000
        """)
    a("""
    s_lshl_b32 s54, s52, 16
    s_and_b32 s55, s52, 0xffff0000
    s_lshl_b32 s56, s53, 16
    s_and_b32 s57, s53, 0xffff0000
    """)
    a("s_waitcnt vmcnt(0)")
    for j in range(16):
        a(f"v_alignbit_b32 {vr(vHr+16+j)}, {vr(vHr+15-j)}, {vr(vHr+15-j)}, 16")
    a(f"""
    v_lshlrev_b32 {vr(vT+4)}, 6, v1
    v_sub_u32 {vr(vT+4)}, 4032, {vr(vT+4)}
    v_add_u32 {vr(vT+4)}, s66, {vr(vT+4)}
    """)
    for i in range(4):
        a(f"ds_write_b128 {vr(vT+4)}, {vr(vHr+16+4*i,4)} offset:{KVSZ+16*i}")
    for i in range(11):
        for c in range(4):
            src = vKr+2*i+(c>>1)
            a((f"v_and_b32 {vr(vKf+4*i+c)}, 0xffff0000, {vr(src)}") if c&1 else f"v_lshlrev_b32 {vr(vKf+4*i+c)}, 16, {vr(src)}")
    for i in range(8):
        for c in range(4):
            src = vVr+2*i+(c>>1)
            a((f"v_and_b32 {vr(vVf+4*i+c)}, 0xffff0000, {vr(src)}") if c&1 else f"v_lshlrev_b32 {vr(vVf+4*i+c)}, 16, {vr(src)}")
    for c in range(4):
        s0,s1,s2_,s3 = 36+4*c, 37+4*c, 38+4*c, 39+4*c
        for i in range(0, 8, 2):
            for u in range(2):
                ii = i+u
                t = vT+u
                a(f"""
                v_mul_f32 {vr(t)}, s{s3}, {vr(vKf+4*(ii)+c)}
                v_fmac_f32 {vr(t)}, s{s2_}, {vr(vKf+4*(ii+1)+c)}
                v_fmac_f32 {vr(t)}, s{s1}, {vr(vKf+4*(ii+2)+c)}
                v_fmac_f32 {vr(t)}, s{s0}, {vr(vKf+4*(ii+3)+c)}
                """)
            a(f"""
            v_cvt_pk_bf16_f32 {vr(vT+2)}, {vr(vT)}, {vr(vT+1)}
            v_lshlrev_b32 {vr(vT)}, 16, {vr(vT+2)}
            v_and_b32 {vr(vT+1)}, 0xffff0000, {vr(vT+2)}
            v_mul_f32 {vr(vT)}, {vr(vT)}, {vr(vVf+4*i+c)}
            v_mul_f32 {vr(vT+1)}, {vr(vT+1)}, {vr(vVf+4*(i+1)+c)}
            v_cvt_pk_bf16_f32 {vr(vP+4*c+(i>>1))}, {vr(vT)}, {vr(vT+1)}
            """)
    a(f"""
    v_lshrrev_b32 {vr(vT)}, 2, v0
    v_mul_u32_u24 {vr(vT)}, 80, {vr(vT)}
    v_and_b32 {vr(vT+1)}, 3, v0
    v_lshl_add_u32 {vr(vT)}, {vr(vT+1)}, 4, {vr(vT)}
    """)
    for c in range(4):
        a(f"ds_write_b128 {vr(vT)}, {vr(vP+4*c,4)} offset:{c*CH + 80*63}")
    a("s_waitcnt lgkmcnt(0)\ns_barrier")
    a(f"""
    v_and_b32 {vr(vT+3)}, 31, v1
    v_lshrrev_b32 {vr(vT+4)}, 5, v1
    v_sub_u32 {vr(vT)}, 31, {vr(vT+3)}
    v_lshlrev_b32 {vr(vT)}, 1, {vr(vT)}
    v_lshl_add_u32 {vr(vT)}, {vr(vT+4)}, 4, {vr(vT)}
    v_add_u32 {vr(vT)}, s66, {vr(vT)}
    v_mul_u32_u24 {vr(vT+1)}, 80, {vr(vT+3)}
    v_lshl_add_u32 {vr(vT+1)}, {vr(vT+4)}, 4, {vr(vT+1)}
    v_add_u32 {vr(vT+1)}, s66, {vr(vT+1)}
    """)
    for i in range(32):
        a(f"v_mov_b32 {vr(vAcc+i)}, 0")
    def rd(m, st):
        n = 0
        for ks in range(2):
            a(f"ds_read_b128 {vr(vA+(st*2+ks)*4,4)}, {vr(vT)} offset:{KVSZ + 64*(63-m) + 32*ks}"); n += 1
        for ks in range(2):
            a(f"ds_read_b128 {vr(vB1+(st*2+ks)*4,4)}, {vr(vT+1)} offset:{80*(32+63-m) + 32*ks}"); n += 1
        if m < 32:
            for ks in range(2):
                a(f"ds_read_b128 {vr(vB0+(st*2+ks)*4,4)}, {vr(vT+1)} offset:{80*(63-m) + 32*ks}"); n += 1
        return n
    rd(0, 0)
    for m in range(64):
        st = m & 1
        if m < 63:
            n = rd(m+1, st ^ 1)
            a(f"s_waitcnt lgkmcnt({n})")
        else:
            a("s_waitcnt lgkmcnt(0)")
        for ks in range(2):
            a(f"v_mfma_f32_32x32x16_bf16 {vr(vAcc+16,16)}, {vr(vA+(st*2+ks)*4,4)}, {vr(vB1+(st*2+ks)*4,4)}, {vr(vAcc+16,16)}")
        if m < 32:
            for ks in range(2):
                a(f"v_mfma_f32_32x32x16_bf16 {vr(vAcc,16)}, {vr(vA+(st*2+ks)*4,4)}, {vr(vB0+(st*2+ks)*4,4)}, {vr(vAcc,16)}")
    a(f"""
    v_mul_u32_u24 {vr(vT+1)}, 80, {vr(vT+3)}
    v_lshl_add_u32 {vr(vT+1)}, {vr(vT+4)}, 3, {vr(vT+1)}
    v_add_u32 {vr(vT+1)}, s66, {vr(vT+1)}
    v_lshlrev_b32 {vr(vT+2)}, 6, {vr(vT+3)}
    v_lshl_add_u32 {vr(vT+2)}, {vr(vT+4)}, 3, {vr(vT+2)}
    s_add_u32 s65, s65, {WS_Y2T}
    s_cmp_eq_u32 s62, 1
    s_cselect_b32 s54, s55, s54
    s_cmp_eq_u32 s62, 2
    s_cselect_b32 s54, s56, s54
    s_cmp_eq_u32 s62, 3
    s_cselect_b32 s54, s57, s54
    """)
    for g in range(2):
        for q in range(4):
            a(f"ds_read_b64 {vr(vA+2*(g*4+q),2)}, {vr(vT+1)} offset:{80*(63+32*g) + 16*q}")
    a("s_waitcnt lgkmcnt(0)\ns_nop 7")
    for g in range(2):
        for q in range(4):
            r = vAcc + 16*g + 4*q
            kvr = vA + 2*(g*4+q)
            a(f"v_cvt_pk_bf16_f32 {vr(vB1)}, {vr(r)}, {vr(r+1)}\nv_cvt_pk_bf16_f32 {vr(vB1+1)}, {vr(r+2)}, {vr(r+3)}")
            for i in range(4):
                src = kvr + (i>>1); ys = vB1 + (i>>1)
                t = vB0 + i; y = vB0 + 4 + i
                a((f"v_and_b32 {vr(t)}, 0xffff0000, {vr(src)}\nv_and_b32 {vr(y)}, 0xffff0000, {vr(ys)}") if i&1 else
                  f"v_lshlrev_b32 {vr(t)}, 16, {vr(src)}\nv_lshlrev_b32 {vr(y)}, 16, {vr(ys)}")
                a(f"v_mul_f32 {vr(t)}, s54, {vr(t)}")
            a(f"""
            v_cvt_pk_bf16_f32 {vr(vB1+2)}, {vr(vB0)}, {vr(vB0+1)}
            v_cvt_pk_bf16_f32 {vr(vB1+3)}, {vr(vB0+2)}, {vr(vB0+3)}
            v_lshlrev_b32 {vr(vB0)}, 16, {vr(vB1+2)}
            v_and_b32 {vr(vB0+1)}, 0xffff0000, {vr(vB1+2)}
            v_lshlrev_b32 {vr(vB0+2)}, 16, {vr(vB1+3)}
            v_and_b32 {vr(vB0+3)}, 0xffff0000, {vr(vB1+3)}
            v_add_f32 {vr(vB0)}, {vr(vB0)}, {vr(vB0+4)}
            v_add_f32 {vr(vB0+1)}, {vr(vB0+1)}, {vr(vB0+5)}
            v_add_f32 {vr(vB0+2)}, {vr(vB0+2)}, {vr(vB0+6)}
            v_add_f32 {vr(vB0+3)}, {vr(vB0+3)}, {vr(vB0+7)}
            v_cvt_pk_bf16_f32 {vr(vB1+4+2*(q&1))}, {vr(vB0)}, {vr(vB0+1)}
            v_cvt_pk_bf16_f32 {vr(vB1+5+2*(q&1))}, {vr(vB0+2)}, {vr(vB0+3)}
            buffer_store_dwordx2 {vr(vB1+4+2*(q&1),2)}, {vr(vT+2)}, {sr(sWS,4)}, s65 offen offset:{2048*g + 16*q}
            s_nop 1
            """)
    a("s_waitcnt vmcnt(0)")
    return vEnd, CONV_LDS

def gate_body(a):
    a(f"""
    s_load_dwordx2 s[4:5], s[0:1], 0
    s_load_dwordx2 s[6:7], s[0:1], 72
    s_load_dwordx2 s[8:9], s[0:1], 96
    v_and_b32 v1, 63, v0
    v_lshrrev_b32 v2, 6, v0
    s_nop 0
    v_readfirstlane_b32 s26, v2
    s_waitcnt lgkmcnt(0)
    s_mov_b32 s12, s4
    s_mov_b32 s13, s5
    s_mov_b32 s14, {2048*1024}
    s_mov_b32 s15, 0x00020000
    s_mov_b32 s16, s6
    s_mov_b32 s17, s7
    s_mov_b32 s18, 1024
    s_mov_b32 s19, 0x00020000
    s_mov_b32 s20, s8
    s_mov_b32 s21, s9
    s_mov_b32 s22, {16*MB}
    s_mov_b32 s23, 0x00020000
    s_lshl_b32 s27, s2, 2
    s_add_u32 s27, s27, s26
    s_lshl_b32 s27, s27, 3
    v_lshlrev_b32 v3, 4, v1
    buffer_load_dwordx4 v[4:7], v3, s[16:19], 0 offen
    """)
    for r in range(8):
        a(f"s_add_u32 s28, s27, {r}\ns_lshl_b32 s28, s28, 10")
        a(f"buffer_load_dwordx4 {vr(16+4*r,4)}, v3, s[12:15], s28 offen")
    a("s_waitcnt vmcnt(0)")
    for j in range(4):
        a(f"v_lshlrev_b32 {vr(8+2*j)}, 16, {vr(4+j)}\nv_and_b32 {vr(9+2*j)}, 0xffff0000, {vr(4+j)}")
    for r in range(8):
        b = 16+4*r
        a("v_mov_b32 v50, 0")
        for j in range(4):
            a(f"""
            v_lshlrev_b32 v48, 16, {vr(b+j)}
            v_and_b32 v49, 0xffff0000, {vr(b+j)}
            v_mul_f32 v48, v48, {vr(8+2*j)}
            v_mul_f32 v49, v49, {vr(9+2*j)}
            v_cvt_pk_bf16_f32 v51, v48, v49
            v_lshlrev_b32 v48, 16, v51
            v_and_b32 v49, 0xffff0000, v51
            v_add_f32 v50, v50, v48
            v_add_f32 v50, v50, v49
            """)
        a("""
        v_mov_b32 v51, v50
        s_nop 1
        v_permlane32_swap_b32 v50, v51
        v_add_f32 v50, v50, v51
        v_mov_b32 v51, v50
        s_nop 1
        v_permlane16_swap_b32 v50, v51
        v_add_f32 v50, v50, v51
        s_nop 1
        v_add_f32_dpp v50, v50, v50 row_ror:8 row_mask:0xf bank_mask:0xf
        s_nop 1
        v_add_f32_dpp v50, v50, v50 row_ror:4 row_mask:0xf bank_mask:0xf
        s_nop 1
        v_add_f32_dpp v50, v50, v50 row_ror:2 row_mask:0xf bank_mask:0xf
        s_nop 1
        v_add_f32_dpp v50, v50, v50 row_ror:1 row_mask:0xf bank_mask:0xf
        v_cvt_pk_bf16_f32 v50, v50, v50
        v_lshlrev_b32 v50, 16, v50
        v_mul_f32 v50, 0xbfb8aa3b, v50
        v_exp_f32 v50, v50
        s_nop 0
        v_add_f32 v50, 1.0, v50
        v_rcp_f32 v50, v50
        s_nop 0
        v_cvt_pk_bf16_f32 v50, v50, v50
        v_lshlrev_b32 v50, 16, v50
        """)
        a(f"v_writelane_b32 v52, 0, 0" if False else f"v_cmp_eq_u32 vcc, {r}, v1\ns_nop 1\nv_cndmask_b32 v52, v52, v50, vcc")
    a(f"""
    v_cmp_gt_u32 vcc, 8, v1
    s_and_saveexec_b64 s[30:31], vcc
    v_lshlrev_b32 v3, 2, v1
    s_lshl_b32 s28, s27, 2
    s_add_u32 s28, s28, {WS_G}
    buffer_store_dword v52, v3, s[20:23], s28 offen
    s_mov_b64 exec, s[30:31]
    s_waitcnt vmcnt(0)
    """)
    return 56, 0
```

```python
from asmlib import *

MB = 1 << 20
WS_Q, WS_K, WS_V, WS_O, WS_Y2T, WS_G = 0, 2*MB, 4*MB, 6*MB, 8*MB, 10*MB
WS_BYTES = 268435456

def gemm_body(a, kind):
    if kind == 'qkv':
        TM, TN, WROW = 128, 128, 1536*2
    else:
        TM, TN, WROW = 64, 64, 512*2
    MT, NT = TM // 64, TN // 64
    XSTR = 144
    WSTR = TN*2 + 64
    XS = TM * XSTR
    WSZ = 64 * WSTR
    BUF = XS + WSZ
    XP = TM // 32
    WTPR = TN*2 // 16
    WRPP = 256 // WTPR
    WP = 64 // WRPP
    sX, sW, sWS = 12, 16, 20
    vXo = 2
    vWo = vXo + XP
    vXl = vWo + WP
    vWl = vXl + 1
    vAr = vWl + 1
    vBr = vAr + 1
    vT = vBr + 1
    base = (vT + 4 + 3)//4*4
    vSX = base
    vSW = vSX + XP*4
    vFA = vSW + WP*4
    vFB = vFA + 2*MT*4
    vAcc = vFB + 2*NT*4
    vGt = vAcc + MT*NT*16
    vEnd = vGt + 16
    a(f"""
    s_load_dwordx2 s[4:5], s[0:1], 0
    s_load_dwordx2 s[6:7], s[0:1], {56 if kind=='qkv' else 64}
    s_load_dwordx2 s[8:9], s[0:1], 96
    """)
    if kind == 'qkv':
        a("s_and_b32 s24, s2, 15\ns_lshr_b32 s25, s2, 4")
    else:
        a("s_and_b32 s24, s2, 31\ns_lshr_b32 s25, s2, 5")
    a(f"""
    v_and_b32 v1, 63, v0
    v_lshrrev_b32 {vr(vT)}, 6, v0
    s_nop 0
    v_readfirstlane_b32 s26, {vr(vT)}
    s_waitcnt lgkmcnt(0)
    s_and_b32 s27, s26, 1
    s_lshr_b32 s28, s26, 1
    """)
    if kind == 'qkv':
        a(f"""
        s_mov_b32 s{sX}, s4
        s_mov_b32 s{sX+1}, s5
        s_mov_b32 s{sX+2}, {2048*1024}
        s_mov_b32 s{sX+3}, 0x00020000
        s_mov_b32 s{sW}, s6
        s_mov_b32 s{sW+1}, s7
        s_mov_b32 s{sW+2}, {512*1536*2}
        s_mov_b32 s{sW+3}, 0x00020000
        """)
    else:
        a(f"""
        s_add_u32 s{sX}, s8, {WS_O}
        s_addc_u32 s{sX+1}, s9, 0
        s_mov_b32 s{sX+2}, {2048*1024}
        s_mov_b32 s{sX+3}, 0x00020000
        s_mov_b32 s{sW}, s6
        s_mov_b32 s{sW+1}, s7
        s_mov_b32 s{sW+2}, {512*512*2}
        s_mov_b32 s{sW+3}, 0x00020000
        """)
    a(f"""
    s_mov_b32 s{sWS}, s8
    s_mov_b32 s{sWS+1}, s9
    s_mov_b32 s{sWS+2}, {16*MB}
    s_mov_b32 s{sWS+3}, 0x00020000
    """)
    a(f"""
    v_lshrrev_b32 {vr(vT)}, 3, v0
    v_and_b32 {vr(vT+1)}, 7, v0
    s_lshl_b32 s29, s24, {7 if TM==128 else 6}
    v_add_u32 {vr(vT+2)}, s29, {vr(vT)}
    v_lshlrev_b32 {vr(vT+2)}, 10, {vr(vT+2)}
    v_lshl_add_u32 {vr(vXo)}, {vr(vT+1)}, 4, {vr(vT+2)}
    """)
    for p in range(1, XP):
        a(f"v_add_u32 {vr(vXo+p)}, {p*32*1024}, {vr(vXo)}")
    a(f"""
    v_mul_u32_u24 {vr(vT+2)}, {XSTR}, {vr(vT)}
    v_lshl_add_u32 {vr(vXl)}, {vr(vT+1)}, 4, {vr(vT+2)}
    """)
    sh = {16:4, 8:3}[WTPR]
    a(f"""
    v_lshrrev_b32 {vr(vT)}, {sh}, v0
    v_and_b32 {vr(vT+1)}, {WTPR-1}, v0
    s_mov_b32 s30, {WROW}
    v_mul_lo_u32 {vr(vT+2)}, s30, {vr(vT)}
    v_lshl_add_u32 {vr(vT+2)}, {vr(vT+1)}, 4, {vr(vT+2)}
    s_lshl_b32 s29, s25, {8 if TN==128 else 7}
    v_add_u32 {vr(vWo)}, s29, {vr(vT+2)}
    """)
    for p in range(1, WP):
        a(f"v_add_u32 {vr(vWo+p)}, {p*WRPP*WROW}, {vr(vWo)}")
    a(f"""
    v_mul_u32_u24 {vr(vT+2)}, {WSTR}, {vr(vT)}
    v_lshl_add_u32 {vr(vWl)}, {vr(vT+1)}, 4, {vr(vT+2)}
    v_add_u32 {vr(vWl)}, {XS}, {vr(vWl)}
    """)
    a(f"""
    v_and_b32 {vr(vT)}, 31, v1
    s_mul_i32 s29, s28, {TM//2}
    v_add_u32 {vr(vT)}, s29, {vr(vT)}
    v_mul_u32_u24 {vr(vT)}, {XSTR}, {vr(vT)}
    v_lshrrev_b32 {vr(vT+1)}, 5, v1
    v_lshl_add_u32 {vr(vAr)}, {vr(vT+1)}, 4, {vr(vT)}
    """)
    a(f"""
    v_lshrrev_b32 {vr(vT)}, 5, v1
    v_lshlrev_b32 {vr(vT)}, 3, {vr(vT)}
    v_bfe_u32 {vr(vT+1)}, v1, 2, 2
    v_add_u32 {vr(vT)}, {vr(vT)}, {vr(vT+1)}
    v_mul_u32_u24 {vr(vT)}, {WSTR}, {vr(vT)}
    v_bfe_u32 {vr(vT+1)}, v1, 4, 1
    v_lshlrev_b32 {vr(vT+1)}, 5, {vr(vT+1)}
    v_and_b32 {vr(vT+2)}, 3, v1
    v_lshlrev_b32 {vr(vT+2)}, 3, {vr(vT+2)}
    v_add3_u32 {vr(vT)}, {vr(vT)}, {vr(vT+1)}, {vr(vT+2)}
    s_mul_i32 s29, s27, {TN}
    s_add_u32 s29, s29, {XS}
    v_add_u32 {vr(vBr)}, s29, {vr(vT)}
    """)
    def gload(c):
        a(f"s_mov_b32 s31, {c*128}")
        a(f"s_mov_b32 s32, {c*64*WROW}")
        for p in range(XP):
            a(f"buffer_load_dwordx4 {vr(vSX+4*p,4)}, {vr(vXo+p)}, {sr(sX,4)}, s31 offen")
        for p in range(WP):
            a(f"buffer_load_dwordx4 {vr(vSW+4*p,4)}, {vr(vWo+p)}, {sr(sW,4)}, s32 offen")
    def lstore(buf):
        for p in range(XP):
            a(f"ds_write_b128 {vr(vXl)}, {vr(vSX+4*p,4)} offset:{buf*BUF + p*32*XSTR}")
        for p in range(WP):
            a(f"ds_write_b128 {vr(vWl)}, {vr(vSW+4*p,4)} offset:{buf*BUF + p*WRPP*WSTR}")
    def fread(buf, ks, st):
        for mt in range(MT):
            a(f"ds_read_b128 {vr(vFA+(st*MT+mt)*4,4)}, {vr(vAr)} offset:{buf*BUF + mt*32*XSTR + ks*32}")
        for nt in range(NT):
            o = buf*BUF + ks*16*WSTR + nt*64
            a(f"ds_read_b64_tr_b16 {vr(vFB+(st*NT+nt)*4,2)}, {vr(vBr)} offset:{o}")
            a(f"ds_read_b64_tr_b16 {vr(vFB+(st*NT+nt)*4+2,2)}, {vr(vBr)} offset:{o+4*WSTR}")
    NRD = MT + 2*NT
    def mainloop(swap):
        for i in range(MT*NT*16):
            a(f"v_mov_b32 {vr(vAcc+i)}, 0")
        gload(0)
        a("s_waitcnt vmcnt(0)")
        lstore(0)
        a("s_waitcnt lgkmcnt(0)\ns_barrier")
        for c in range(8):
            buf = c & 1
            if c < 7:
                gload(c+1)
            fread(buf, 0, 0)
            for ks in range(4):
                st = ks & 1
                if ks < 3:
                    fread(buf, ks+1, st ^ 1)
                    a(f"s_waitcnt lgkmcnt({NRD})")
                else:
                    a("s_waitcnt lgkmcnt(0)")
                for mt in range(MT):
                    for nt in range(NT):
                        A = vr(vFA+(st*MT+mt)*4,4); B = vr(vFB+(st*NT+nt)*4,4)
                        acc = vr(vAcc+(mt*NT+nt)*16,16)
                        if swap:
                            a(f"v_mfma_f32_32x32x16_bf16 {acc}, {B}, {A}, {acc}")
                        else:
                            a(f"v_mfma_f32_32x32x16_bf16 {acc}, {A}, {B}, {acc}")
            if c < 7:
                a("s_waitcnt vmcnt(0)")
                lstore(buf ^ 1)
                a("s_waitcnt lgkmcnt(0)\ns_barrier")
        a("s_nop 15\ns_nop 3")
    if kind == 'qkv':
        Lv = a.newlabel("Lv"); Le = a.newlabel("Le")
        a(f"s_cmp_ge_u32 s25, 8\ns_cbranch_scc1 {Lv}")
        mainloop(True)
        a(f"""
        v_and_b32 {vr(vT)}, 31, v1
        s_lshl_b32 s29, s24, 7
        s_mul_i32 s30, s28, 64
        s_add_u32 s29, s29, s30
        v_add_u32 {vr(vT)}, s29, {vr(vT)}
        v_lshlrev_b32 {vr(vT)}, 5, {vr(vT)}
        v_lshrrev_b32 {vr(vT+1)}, 5, v1
        v_lshl_add_u32 {vr(vT)}, {vr(vT+1)}, 3, {vr(vT)}
        s_lshr_b32 s29, s25, 2
        s_lshl_b32 s29, s29, 21
        s_and_b32 s30, s25, 3
        s_lshl_b32 s30, s30, 3
        s_lshl_b32 s31, s27, 2
        s_add_u32 s30, s30, s31
        s_lshl_b32 s30, s30, 16
        s_add_u32 s29, s29, s30
        """)
        for mt in range(MT):
            for nt in range(NT):
                for q in range(4):
                    r = vAcc+(mt*NT+nt)*16+q*4
                    hoff = (nt*2 + (q>>1))*65536
                    a(f"s_add_u32 s33, s29, {hoff + mt*32*32}")
                    a(f"v_cvt_pk_bf16_f32 {vr(vSX)}, {vr(r)}, {vr(r+1)}")
                    a(f"v_cvt_pk_bf16_f32 {vr(vSX+1)}, {vr(r+2)}, {vr(r+3)}")
                    a(f"buffer_store_dwordx2 {vr(vSX,2)}, {vr(vT)}, {sr(sWS,4)}, s33 offen offset:{(q&1)*16}")
                    a("s_nop 1")
        a(f"s_branch {Le}")
        a.label(Lv)
        mainloop(False)
        a(f"""
        v_and_b32 {vr(vT)}, 31, v1
        v_lshlrev_b32 {vr(vT)}, 12, {vr(vT)}
        v_lshrrev_b32 {vr(vT+1)}, 5, v1
        v_lshl_add_u32 {vr(vT)}, {vr(vT+1)}, 3, {vr(vT)}
        s_sub_u32 s29, s25, 8
        s_lshl_b32 s29, s29, 7
        s_lshl_b32 s30, s27, 6
        s_add_u32 s29, s29, s30
        s_lshl_b32 s29, s29, 12
        s_lshl_b32 s30, s24, 8
        s_lshl_b32 s31, s28, 7
        s_add_u32 s30, s30, s31
        s_add_u32 s29, s29, s30
        s_add_u32 s29, s29, {WS_V}
        """)
        for mt in range(MT):
            for nt in range(NT):
                a(f"s_add_u32 s33, s29, {nt*32*4096 + mt*64}")
                for q in range(4):
                    r = vAcc+(mt*NT+nt)*16+q*4
                    a(f"v_cvt_pk_bf16_f32 {vr(vSX+2*(q&1))}, {vr(r)}, {vr(r+1)}")
                    a(f"v_cvt_pk_bf16_f32 {vr(vSX+2*(q&1)+1)}, {vr(r+2)}, {vr(r+3)}")
                    a(f"buffer_store_dwordx2 {vr(vSX+2*(q&1),2)}, {vr(vT)}, {sr(sWS,4)}, s33 offen offset:{q*16}")
                    a("s_nop 1")
        a.label(Le)
    else:
        mainloop(False)
        a(f"""
        s_load_dwordx2 s[4:5], s[0:1], 0
        s_load_dwordx2 s[6:7], s[0:1], 80
        s_waitcnt lgkmcnt(0)
        s_mov_b32 s36, s4
        s_mov_b32 s37, s5
        s_mov_b32 s38, {2048*1024}
        s_mov_b32 s39, 0x00020000
        s_mov_b32 s40, s6
        s_mov_b32 s41, s7
        s_mov_b32 s42, {2048*1024}
        s_mov_b32 s43, 0x00020000
        v_and_b32 {vr(vT)}, 31, v1
        s_lshl_b32 s29, s25, 6
        s_lshl_b32 s30, s27, 5
        s_add_u32 s29, s29, s30
        v_add_u32 {vr(vT)}, s29, {vr(vT)}
        v_lshrrev_b32 {vr(vT+1)}, 5, v1
        s_lshl_b32 s30, s24, 6
        s_lshl_b32 s31, s28, 5
        s_add_u32 s30, s30, s31
        v_lshl_add_u32 {vr(vT+1)}, {vr(vT+1)}, 2, s30
        v_lshlrev_b32 {vr(vT+2)}, 12, {vr(vT)}
        v_lshl_add_u32 {vr(vT+2)}, {vr(vT+1)}, 1, {vr(vT+2)}
        v_lshlrev_b32 {vr(vT+3)}, 10, {vr(vT+1)}
        v_lshl_add_u32 {vr(vT+3)}, {vr(vT)}, 1, {vr(vT+3)}
        v_lshlrev_b32 {vr(vT+1)}, 2, {vr(vT+1)}
        s_mov_b32 s33, {WS_Y2T}
        s_mov_b32 s34, {WS_G}
        """)
        for q in range(4):
            a(f"buffer_load_dwordx2 {vr(vSX+2*q,2)}, {vr(vT+2)}, {sr(sWS,4)}, s33 offen offset:{q*16}")
            a(f"buffer_load_dwordx4 {vr(vGt+4*q,4)}, {vr(vT+1)}, {sr(sWS,4)}, s34 offen offset:{q*32}")
        qreg = vFA
        for q in range(4):
            for i in range(4):
                a(f"buffer_load_ushort {vr(qreg+q*4+i)}, {vr(vT+3)}, {sr(36,4)}, 0 offen offset:{(8*q+i)*1024 % 4096}" if False else
                  f"s_mov_b32 s35, {(8*q+i)*1024}\nbuffer_load_ushort {vr(qreg+q*4+i)}, {vr(vT+3)}, {sr(36,4)}, s35 offen")
        a("s_waitcnt vmcnt(0)")
        for q in range(4):
            for i in range(4):
                acc = vAcc + q*4 + i
                y = vSX + 2*q + (i >> 1)
                t = vT
                if i & 1:
                    a(f"v_and_b32 {vr(t)}, 0xffff0000, {vr(y)}")
                else:
                    a(f"v_lshlrev_b32 {vr(t)}, 16, {vr(y)}")
                qq = qreg+q*4+i
                g = vGt+4*q+i
                a(f"""
                v_lshlrev_b32 {vr(qq)}, 16, {vr(qq)}
                v_mul_f32 {vr(t)}, {vr(qq)}, {vr(t)}
                v_cvt_pk_bf16_f32 {vr(t)}, {vr(t)}, {vr(t)}
                v_lshlrev_b32 {vr(t)}, 16, {vr(t)}
                v_mul_f32 {vr(t)}, {vr(g)}, {vr(t)}
                v_cvt_pk_bf16_f32 {vr(t)}, {vr(t)}, {vr(t)}
                v_lshlrev_b32 {vr(t)}, 16, {vr(t)}
                v_cvt_pk_bf16_f32 {vr(acc)}, {vr(acc)}, {vr(acc)}
                v_lshlrev_b32 {vr(acc)}, 16, {vr(acc)}
                v_sub_f32 {vr(g)}, 1.0, {vr(g)}
                v_cvt_pk_bf16_f32 {vr(g)}, {vr(g)}, {vr(g)}
                v_lshlrev_b32 {vr(g)}, 16, {vr(g)}
                v_mul_f32 {vr(acc)}, {vr(g)}, {vr(acc)}
                v_cvt_pk_bf16_f32 {vr(acc)}, {vr(acc)}, {vr(acc)}
                v_lshlrev_b32 {vr(acc)}, 16, {vr(acc)}
                v_add_f32 {vr(acc)}, {vr(t)}, {vr(acc)}
                v_cvt_pk_bf16_f32 {vr(acc)}, {vr(acc)}, {vr(acc)}
                s_mov_b32 s35, {(8*q+i)*1024}
                buffer_store_short {vr(acc)}, {vr(vT+3)}, {sr(40,4)}, s35 offen
                """)
    a("s_waitcnt vmcnt(0)")
    return vEnd, 2*BUF
```

```python
import sys
from asmlib import *
from gemm import gemm_body
from attn import attn_body
from conv import conv_body, gate_body
HDR = open("gated_mix__ssm_conv_h3__sliding_block__prompt.s.ref").read().split("; Override launch")[0]
P = "gated_mix__ssm_conv_h3__sliding_block__prompt"
def mk(name, body, nwg):
    a = Asm()
    a.raw(kernel_header(name))
    Lx = f"Lexit_{name}"
    a(f"s_cmp_ge_u32 s2, {nwg}\ns_cbranch_scc1 {Lx}")
    v, lds = body(a)
    a.label(Lx)
    a("s_endpgm")
    return a.text(), kernel_desc(name, v), lds
ks = [
 ("qkv_kernel", lambda a: gemm_body(a, 'qkv'), 192),
 ("conv_kernel", conv_body, 128),
 ("gate_kernel", gate_body, 64),
 ("attn_kernel", attn_body, 1024),
 (P+"_kernel", lambda a: gemm_body(a, 'out'), 256),
]
texts, descs, launches = [], [], []
for n, b, w in ks:
    t, d, lds = mk(n, b, w)
    texts.append(t); descs.append(d)
    launches.append(f"; @launch kernel={n} grid=({w},1,1) block=(256,1,1) lds={lds}")
out = HDR + "\n".join(launches) + "\n" + '.amdgcn_target "amdgcn-amd-amdhsa--gfx950"\n.text\n' + "".join(texts) + '.section .rodata,"a"\n' + "".join(descs)
open("cdna_kernels/" + P + ".s", "w").write(out)
print(len(out), "bytes")
```

```python
from asmlib import *
from gemm import WS_Q, WS_K, WS_V, WS_O, MB

def attn_body(a):
    sWS = 12
    vC, vG, vKo, vVo, vT = 2, 3, 4, 5, 6
    vQ = 10
    vK = 12
    vV = 48
    vS = 84
    vO = 152
    vEnd = 156
    a(f"""
    s_load_dwordx2 s[8:9], s[0:1], 96
    v_and_b32 v1, 63, v0
    v_lshrrev_b32 {vr(vT)}, 6, v0
    s_nop 0
    v_readfirstlane_b32 s26, {vr(vT)}
    s_lshr_b32 s24, s2, 5
    s_and_b32 s25, s2, 31
    s_lshl_b32 s25, s25, 2
    s_add_u32 s25, s25, s26
    s_lshl_b32 s25, s25, 4
    s_waitcnt lgkmcnt(0)
    s_mov_b32 s{sWS}, s8
    s_mov_b32 s{sWS+1}, s9
    s_mov_b32 s{sWS+2}, {16*MB}
    s_mov_b32 s{sWS+3}, 0x00020000
    v_and_b32 {vr(vC)}, 15, v1
    v_lshrrev_b32 {vr(vG)}, 4, v1
    v_lshlrev_b32 {vr(vKo)}, 5, {vr(vC)}
    v_lshl_add_u32 {vr(vKo)}, {vr(vG)}, 3, {vr(vKo)}
    v_lshlrev_b32 {vr(vVo)}, 12, {vr(vC)}
    v_lshl_add_u32 {vr(vVo)}, {vr(vG)}, 3, {vr(vVo)}
    ; s27 = (h*2048+q0)*32
    s_lshl_b32 s27, s24, 11
    s_add_u32 s27, s27, s25
    s_lshl_b32 s27, s27, 5
    buffer_load_dwordx2 {vr(vQ,2)}, {vr(vKo)}, {sr(sWS,4)}, s27 offen
    s_sub_i32 s28, 256, s25
    s_max_i32 s28, s28, 0
    s_lshr_b32 s28, s28, 4
    s_add_u32 s29, s27, {WS_K - 256*32}
    s_lshl_b32 s30, s24, 16
    s_lshl_b32 s31, s25, 1
    s_add_u32 s30, s30, s31
    s_add_u32 s30, s30, {WS_V - 512}
    """)
    a(f"v_mov_b32 {vr(vV+34)}, 0\nv_mov_b32 {vr(vV+35)}, 0")
    for t in range(17):
        L = a.newlabel("Lsk")
        a(f"s_cmp_gt_u32 s28, {t}\ns_cbranch_scc1 {L}")
        a(f"s_add_u32 s32, s29, {t*512}\ns_add_u32 s33, s30, {t*32}")
        a(f"buffer_load_dwordx2 {vr(vK+2*t,2)}, {vr(vKo)}, {sr(sWS,4)}, s32 offen")
        a(f"buffer_load_dwordx2 {vr(vV+2*t,2)}, {vr(vVo)}, {sr(sWS,4)}, s33 offen")
        L2 = a.newlabel("Lsj")
        a(f"s_branch {L2}")
        a.label(L)
        a(f"v_mov_b32 {vr(vV+2*t)}, 0\nv_mov_b32 {vr(vV+2*t+1)}, 0")
        a.label(L2)
    a("s_waitcnt vmcnt(0)")
    for t in range(17):
        L = a.newlabel("Lsm")
        a(f"s_cmp_gt_u32 s28, {t}\ns_cbranch_scc1 {L}")
        a(f"v_mfma_f32_16x16x16_bf16 {vr(vS+4*t,4)}, {vr(vK+2*t,2)}, {vr(vQ,2)}, 0")
        L2 = a.newlabel("Lsn")
        a(f"s_branch {L2}")
        a.label(L)
        for i in range(4):
            a(f"v_mov_b32 {vr(vS+4*t+i)}, 0xce6e6b28")
        a.label(L2)
    a("s_nop 7\ns_nop 1")
    a(f"v_lshlrev_b32 {vr(vT)}, 2, {vr(vG)}\nv_mov_b32 {vr(vT+1)}, 0xce6e6b28")
    for i in range(4):
        a(f"""
        v_add_u32 {vr(vT+2)}, {i}, {vr(vT)}
        v_cmp_lt_u32 vcc, {vr(vC)}, {vr(vT+2)}
        s_nop 1
        v_cndmask_b32 {vr(vS+i)}, {vr(vT+1)}, {vr(vS+i)}, vcc
        v_cndmask_b32 {vr(vS+64+i)}, {vr(vS+64+i)}, {vr(vT+1)}, vcc
        """)
    a(f"v_max3_f32 {vr(vT)}, {vr(vS)}, {vr(vS+1)}, {vr(vS+2)}")
    a(f"v_max_f32 {vr(vT)}, {vr(vT)}, {vr(vS+3)}")
    for i in range(4, 68, 2):
        a(f"v_max3_f32 {vr(vT)}, {vr(vT)}, {vr(vS+i)}, {vr(vS+i+1)}")
    def xreduce(op):
        a(f"""
        v_mov_b32 {vr(vT+1)}, {vr(vT)}
        s_nop 1
        v_permlane32_swap_b32 {vr(vT)}, {vr(vT+1)}
        {op} {vr(vT)}, {vr(vT)}, {vr(vT+1)}
        v_mov_b32 {vr(vT+1)}, {vr(vT)}
        s_nop 1
        v_permlane16_swap_b32 {vr(vT)}, {vr(vT+1)}
        {op} {vr(vT)}, {vr(vT)}, {vr(vT+1)}
        """)
    xreduce("v_max_f32")
    a(f"""
    s_mov_b32 s34, 0x3eb8aa3b
    v_mul_f32 {vr(vT+2)}, s34, {vr(vT)}
    v_sub_f32 {vr(vT+2)}, 0, {vr(vT+2)}
    v_mov_b32 {vr(vT+3)}, 0
    """)
    for i in range(68):
        a(f"v_fma_f32 {vr(vS+i)}, {vr(vS+i)}, s34, {vr(vT+2)}")
        a(f"v_exp_f32 {vr(vS+i)}, {vr(vS+i)}")
    a("s_nop 0")
    for t in range(17):
        a(f"v_cvt_pk_bf16_f32 {vr(vK+2*t)}, {vr(vS+4*t)}, {vr(vS+4*t+1)}")
        a(f"v_cvt_pk_bf16_f32 {vr(vK+2*t+1)}, {vr(vS+4*t+2)}, {vr(vS+4*t+3)}")
    a(f"v_mov_b32 {vr(vK+34)}, 0\nv_mov_b32 {vr(vK+35)}, 0")
    for i in range(4):
        a(f"v_mov_b32 {vr(vS+i)}, 0x3f803f80")
    a("s_nop 1")
    for j in range(9):
        a(f"v_mfma_f32_16x16x32_bf16 {vr(vO,4)}, {vr(vV+4*j,4)}, {vr(vK+4*j,4)}, {'0' if j==0 else vr(vO,4)}")
        a(f"v_mfma_f32_16x16x32_bf16 {vr(vS+4,4)}, {vr(vS,4)}, {vr(vK+4*j,4)}, {'0' if j==0 else vr(vS+4,4)}")
    a("s_nop 7\ns_nop 1")
    a(f"v_rcp_f32 {vr(vT)}, {vr(vS+4)}\ns_nop 0")
    for i in range(4):
        a(f"v_mul_f32 {vr(vO+i)}, {vr(vO+i)}, {vr(vT)}")
    a(f"""
    v_cvt_pk_bf16_f32 {vr(vO)}, {vr(vO)}, {vr(vO+1)}
    v_cvt_pk_bf16_f32 {vr(vO+1)}, {vr(vO+2)}, {vr(vO+3)}
    v_lshlrev_b32 {vr(vKo)}, 10, {vr(vC)}
    v_lshl_add_u32 {vr(vKo)}, {vr(vG)}, 3, {vr(vKo)}
    s_lshl_b32 s32, s25, 10
    s_lshl_b32 s33, s24, 5
    s_add_u32 s32, s32, s33
    s_add_u32 s32, s32, {WS_O}
    buffer_store_dwordx2 {vr(vO,2)}, {vr(vKo)}, {sr(sWS,4)}, s32 offen
    s_waitcnt vmcnt(0)
    """)
    return vEnd, 0
```

```python
from asmlib import *
from gemm import WS_Y2T, WS_G, MB
WS_KVT = 12*MB

KVSZ = 80*127
HCP = 4160
CH = KVSZ + 4*HCP
CONV_LDS = 2*CH

def conv_body(a):
    sK, sV, sH, sWS = 12, 16, 20, 24
    vT = 2
    vKr = 10
    vVr = 22
    vKf = 32
    vVf = 56
    vP = 72
    vKV = 80
    vA = 10; vB1 = 26; vB0 = 42; vAcc = 64
    vHr = 96
    vHo = 116
    vEnd = 148
    a(f"""
    s_load_dwordx2 s[4:5], s[0:1], 8
    s_load_dwordx2 s[6:7], s[0:1], 16
    s_load_dwordx2 s[8:9], s[0:1], 24
    s_load_dwordx2 s[10:11], s[0:1], 32
    s_load_dwordx2 s[58:59], s[0:1], 40
    s_load_dwordx2 s[60:61], s[0:1], 96
    v_and_b32 v1, 63, v0
    v_lshrrev_b32 {vr(vT)}, 6, v0
    s_nop 0
    v_readfirstlane_b32 s62, {vr(vT)}
    s_lshl_b32 s63, s2, 1
    s_waitcnt lgkmcnt(0)
    s_lshl_b32 s64, s63, 3
    s_add_u32 s8, s8, s64
    s_addc_u32 s9, s9, 0
    s_load_dwordx4 s[28:31], s[8:9], 0
    s_lshl_b32 s64, s63, 1
    s_add_u32 s58, s58, s64
    s_addc_u32 s59, s59, 0
    s_load_dword s52, s[58:59], 0
    s_lshr_b32 s67, s62, 1
    s_and_b32 s68, s62, 1
    s_mov_b32 s{sK}, s4
    s_mov_b32 s{sK+1}, s5
    s_mov_b32 s{sK+2}, {2048*1024}
    s_mov_b32 s{sK+3}, 0x00020000
    s_mov_b32 s{sV}, s6
    s_mov_b32 s{sV+1}, s7
    s_mov_b32 s{sV+2}, {2048*1024}
    s_mov_b32 s{sV+3}, 0x00020000
    s_mov_b32 s{sH}, s10
    s_mov_b32 s{sH+1}, s11
    s_mov_b32 s{sH+2}, {512*4096}
    s_mov_b32 s{sH+3}, 0x00020000
    s_mov_b32 s{sWS}, s60
    s_mov_b32 s{sWS+1}, s61
    s_mov_b32 s{sWS+2}, {16*MB}
    s_mov_b32 s{sWS+3}, 0x00020000
    v_lshlrev_b32 {vr(vT)}, 13, v0
    s_lshl_b32 s64, s63, 1
    v_add_u32 {vr(vT)}, s64, {vr(vT)}
    v_add_u32 {vr(vT+1)}, 4096, {vr(vT)}
    v_subrev_u32 {vr(vT+2)}, 3072, {vr(vT)}
    s_add_u32 s64, s63, s67
    s_lshl_b32 s65, s64, 12
    v_lshlrev_b32 {vr(vT+3)}, 6, v1
    v_subrev_u32 {vr(vT+4)}, 8, {vr(vT+3)}
    v_add_u32 {vr(vT+4)}, s65, {vr(vT+4)}
    buffer_load_dwordx2 {vr(vHr,2)}, {vr(vT+4)}, {sr(sH,4)}, 0 offen
    """)
    for i in range(4):
        a(f"buffer_load_dwordx4 {vr(vHr+2+4*i,4)}, {vr(vT+3)}, {sr(sH,4)}, s65 offen offset:{16*i}")
    a(f"""
    v_lshrrev_b32 {vr(vT+5)}, 7, v0
    v_add_u32 {vr(vT+5)}, s63, {vr(vT+5)}
    v_lshlrev_b32 {vr(vT+5)}, 12, {vr(vT+5)}
    v_and_b32 {vr(vT+6)}, 127, v0
    v_lshl_add_u32 {vr(vT+5)}, {vr(vT+6)}, 5, {vr(vT+5)}
    s_mov_b32 s71, {WS_KVT}
    buffer_load_dwordx4 {vr(vKV,4)}, {vr(vT+5)}, {sr(sWS,4)}, s71 offen
    buffer_load_dwordx4 {vr(vKV+4,4)}, {vr(vT+5)}, {sr(sWS,4)}, s71 offen offset:16
    """)
    a(f"""
    s_mul_i32 s66, s67, {CH}
    v_mov_b32 {vr(vP)}, 0
    v_mov_b32 {vr(vP+1)}, 0
    v_mov_b32 {vr(vP+2)}, 0
    v_mov_b32 {vr(vP+3)}, 0
    v_mul_u32_u24 {vr(vT+5)}, 80, v1
    v_add_u32 {vr(vT+5)}, s66, {vr(vT+5)}
    """)
    for i in range(5):
        a(f"ds_write_b128 {vr(vT+5)}, {vr(vP,4)} offset:{16*i}")
    a(f"""
    v_and_b32 {vr(vT+6)}, 3, v1
    v_lshlrev_b32 {vr(vT+6)}, 4, {vr(vT+6)}
    v_add_u32 {vr(vT+6)}, s66, {vr(vT+6)}
    """)
    for p in range(4):
        a(f"ds_write_b128 {vr(vT+6)}, {vr(vP,4)} offset:{KVSZ+p*HCP+4096}")
    a("s_waitcnt lgkmcnt(0)\ns_barrier")
    for c in range(2):
        a(f"""
        s_lshl_b32 s{36+4*c}, s{28+2*c}, 16
        s_and_b32 s{37+4*c}, s{28+2*c}, 0xffff0000
        s_lshl_b32 s{38+4*c}, s{29+2*c}, 16
        s_and_b32 s{39+4*c}, s{29+2*c}, 0xffff0000
        """)
    a("""
    s_lshl_b32 s54, s52, 16
    s_and_b32 s55, s52, 0xffff0000
    s_cmp_eq_u32 s67, 1
    s_cselect_b32 s54, s55, s54
    s_waitcnt vmcnt(0)
    v_cmp_eq_u32 vcc, 0, v1
    s_nop 1
    """)
    a(f"v_cndmask_b32 {vr(vHr)}, {vr(vHr)}, 0, vcc\nv_cndmask_b32 {vr(vHr+1)}, {vr(vHr+1)}, 0, vcc" if False else
      f"v_mov_b32 {vr(vT+7)}, 0\nv_cndmask_b32 {vr(vHr)}, {vr(vHr)}, {vr(vT+7)}, vcc\nv_cndmask_b32 {vr(vHr+1)}, {vr(vHr+1)}, {vr(vT+7)}, vcc")
    R = vKf
    for j in range(18):
        a(f"v_alignbit_b32 {vr(R+j)}, {vr(vHr+17-j)}, {vr(vHr+17-j)}, 16")
    La = a.newlabel("Lh1"); Lb = a.newlabel("Lhd")
    a(f"""
    v_lshlrev_b32 {vr(vT+4)}, 6, v1
    v_sub_u32 {vr(vT+4)}, 4032, {vr(vT+4)}
    v_add_u32 {vr(vT+4)}, s66, {vr(vT+4)}
    s_cmp_eq_u32 s68, 1
    s_cbranch_scc1 {La}
    """)
    for half in range(2):
        for j in range(16):
            a(f"v_mov_b32 {vr(vHo+j)}, {vr(R+j+half)}")
            a(f"v_alignbit_b32 {vr(vHo+16+j)}, {vr(R+j+half+1)}, {vr(R+j+half)}, 16")
        for pp in range(2):
            for i in range(4):
                a(f"ds_write_b128 {vr(vT+4)}, {vr(vHo+16*pp+4*i,4)} offset:{KVSZ+(2*half+pp)*HCP+16*i}")
        if half == 0:
            a(f"s_branch {Lb}")
            a.label(La)
    a.label(Lb)
    a("s_waitcnt lgkmcnt(0)")
    a(f"""
    v_and_b32 {vr(vT)}, 127, v0
    v_lshrrev_b32 {vr(vT+1)}, 1, {vr(vT)}
    v_mul_u32_u24 {vr(vT+1)}, 80, {vr(vT+1)}
    v_and_b32 {vr(vT)}, 1, {vr(vT)}
    v_lshl_add_u32 {vr(vT)}, {vr(vT)}, 5, {vr(vT+1)}
    v_lshrrev_b32 {vr(vT+1)}, 7, v0
    v_mul_u32_u24 {vr(vT+1)}, {CH}, {vr(vT+1)}
    v_add_u32 {vr(vT)}, {vr(vT)}, {vr(vT+1)}
    ds_write_b128 {vr(vT)}, {vr(vKV,4)} offset:{80*63}
    ds_write_b128 {vr(vT)}, {vr(vKV+4,4)} offset:{80*63+16}
    s_waitcnt lgkmcnt(0)
    s_barrier
    """)
    a(f"""
    v_and_b32 {vr(vT+3)}, 31, v1
    v_lshrrev_b32 {vr(vT+4)}, 5, v1
    v_sub_u32 {vr(vT)}, 31, {vr(vT+3)}
    v_and_b32 {vr(vT+5)}, 3, {vr(vT)}
    v_sub_u32 {vr(vT)}, {vr(vT)}, {vr(vT+5)}
    v_lshlrev_b32 {vr(vT)}, 1, {vr(vT)}
    v_lshl_add_u32 {vr(vT)}, {vr(vT+4)}, 4, {vr(vT)}
    v_mul_u32_u24 {vr(vT+5)}, {HCP}, {vr(vT+5)}
    v_add3_u32 {vr(vT)}, {vr(vT)}, {vr(vT+5)}, s66
    v_mul_u32_u24 {vr(vT+1)}, 80, {vr(vT+3)}
    v_lshl_add_u32 {vr(vT+1)}, {vr(vT+4)}, 4, {vr(vT+1)}
    v_add_u32 {vr(vT+1)}, s66, {vr(vT+1)}
    """)
    for i in range(32):
        a(f"v_mov_b32 {vr(vAcc+i)}, 0")
    def rd(task, st):
        g, m = task
        for ks in range(2):
            o = KVSZ + 64*(63-m) + 32*ks
            a(f"ds_read_b64 {vr(vA+(st*2+ks)*4,2)}, {vr(vT)} offset:{o}")
            a(f"ds_read_b64 {vr(vA+(st*2+ks)*4+2,2)}, {vr(vT)} offset:{o+8}")
        for ks in range(2):
            a(f"ds_read_b128 {vr(vB1+(st*2+ks)*4,4)}, {vr(vT+1)} offset:{80*(32*g+63-m) + 32*ks}")
        return 6
    def run(tasks):
        rd(tasks[0], 0)
        for i, (g, m) in enumerate(tasks):
            st = i & 1
            if i+1 < len(tasks):
                rd(tasks[i+1], st ^ 1)
                a("s_waitcnt lgkmcnt(6)")
            else:
                a("s_waitcnt lgkmcnt(0)")
            for ks in range(2):
                acc = vr(vAcc+16*g,16)
                a(f"v_mfma_f32_32x32x16_bf16 {acc}, {vr(vA+(st*2+ks)*4,4)}, {vr(vB1+(st*2+ks)*4,4)}, {acc}")
    L1 = a.newlabel("Lc1"); L2 = a.newlabel("Lc2")
    a(f"s_cmp_eq_u32 s68, 1\ns_cbranch_scc1 {L1}")
    run([(0, m) for m in range(32)] + [(1, m) for m in range(16)])
    a(f"""
    s_nop 7
    s_nop 7
    s_barrier
    v_lshlrev_b32 {vr(vT+5)}, 4, v1
    v_add_u32 {vr(vT+5)}, s66, {vr(vT+5)}
    """)
    for i in range(4):
        a(f"ds_write_b128 {vr(vT+5)}, {vr(vAcc+16+4*i,4)} offset:{KVSZ+1024*i}")
    a(f"s_waitcnt lgkmcnt(0)\ns_barrier\ns_mov_b32 s69, 0\ns_branch {L2}")
    a.label(L1)
    run([(1, m) for m in range(16, 64)])
    a(f"""
    s_nop 7
    s_nop 7
    s_barrier
    s_barrier
    v_lshlrev_b32 {vr(vT+5)}, 4, v1
    v_add_u32 {vr(vT+5)}, s66, {vr(vT+5)}
    """)
    for i in range(4):
        a(f"ds_read_b128 {vr(vAcc+4*i,4)}, {vr(vT+5)} offset:{KVSZ+1024*i}")
    a("s_waitcnt lgkmcnt(0)")
    for i in range(16):
        a(f"v_add_f32 {vr(vAcc+i)}, {vr(vAcc+i)}, {vr(vAcc+16+i)}")
    a("s_mov_b32 s69, 1")
    a.label(L2)
    a(f"""
    s_mul_i32 s70, s69, {80*32}
    s_add_u32 s70, s70, s66
    v_mul_u32_u24 {vr(vT+1)}, 80, {vr(vT+3)}
    v_lshl_add_u32 {vr(vT+1)}, {vr(vT+4)}, 3, {vr(vT+1)}
    v_add_u32 {vr(vT+1)}, s70, {vr(vT+1)}
    v_lshlrev_b32 {vr(vT+2)}, 6, {vr(vT+3)}
    v_lshl_add_u32 {vr(vT+2)}, {vr(vT+4)}, 3, {vr(vT+2)}
    s_lshl_b32 s70, s69, 11
    s_add_u32 s65, s65, s70
    s_add_u32 s65, s65, {WS_Y2T}
    """)
    for q in range(4):
        a(f"ds_read_b64 {vr(vA+2*q,2)}, {vr(vT+1)} offset:{80*63 + 16*q}")
    a("s_waitcnt lgkmcnt(0)")
    for q in range(4):
        r = vAcc + 4*q
        kvr = vA + 2*q
        a(f"v_cvt_pk_bf16_f32 {vr(vB1)}, {vr(r)}, {vr(r+1)}\nv_cvt_pk_bf16_f32 {vr(vB1+1)}, {vr(r+2)}, {vr(r+3)}")
        for i in range(4):
            src = kvr + (i>>1); ys = vB1 + (i>>1)
            t = vB0 + i; y = vB0 + 4 + i
            a((f"v_and_b32 {vr(t)}, 0xffff0000, {vr(src)}\nv_and_b32 {vr(y)}, 0xffff0000, {vr(ys)}") if i&1 else
              f"v_lshlrev_b32 {vr(t)}, 16, {vr(src)}\nv_lshlrev_b32 {vr(y)}, 16, {vr(ys)}")
            a(f"v_mul_f32 {vr(t)}, s54, {vr(t)}")
        a(f"""
        v_cvt_pk_bf16_f32 {vr(vB1+2)}, {vr(vB0)}, {vr(vB0+1)}
        v_cvt_pk_bf16_f32 {vr(vB1+3)}, {vr(vB0+2)}, {vr(vB0+3)}
        v_lshlrev_b32 {vr(vB0)}, 16, {vr(vB1+2)}
        v_and_b32 {vr(vB0+1)}, 0xffff0000, {vr(vB1+2)}
        v_lshlrev_b32 {vr(vB0+2)}, 16, {vr(vB1+3)}
        v_and_b32 {vr(vB0+3)}, 0xffff0000, {vr(vB1+3)}
        v_add_f32 {vr(vB0)}, {vr(vB0)}, {vr(vB0+4)}
        v_add_f32 {vr(vB0+1)}, {vr(vB0+1)}, {vr(vB0+5)}
        v_add_f32 {vr(vB0+2)}, {vr(vB0+2)}, {vr(vB0+6)}
        v_add_f32 {vr(vB0+3)}, {vr(vB0+3)}, {vr(vB0+7)}
        v_cvt_pk_bf16_f32 {vr(vB1+4+2*(q&1))}, {vr(vB0)}, {vr(vB0+1)}
        v_cvt_pk_bf16_f32 {vr(vB1+5+2*(q&1))}, {vr(vB0+2)}, {vr(vB0+3)}
        buffer_store_dwordx2 {vr(vB1+4+2*(q&1),2)}, {vr(vT+2)}, {sr(sWS,4)}, s65 offen offset:{16*q}
        s_nop 1
        """)
    a("s_waitcnt vmcnt(0)")
    return vEnd, CONV_LDS

def gate_body(a):
    a(f"""
    s_load_dwordx2 s[4:5], s[0:1], 0
    s_load_dwordx2 s[6:7], s[0:1], 72
    s_load_dwordx2 s[8:9], s[0:1], 96
    v_and_b32 v1, 63, v0
    v_lshrrev_b32 v2, 6, v0
    s_nop 0
    v_readfirstlane_b32 s26, v2
    s_waitcnt lgkmcnt(0)
    s_mov_b32 s12, s4
    s_mov_b32 s13, s5
    s_mov_b32 s14, {2048*1024}
    s_mov_b32 s15, 0x00020000
    s_mov_b32 s16, s6
    s_mov_b32 s17, s7
    s_mov_b32 s18, 1024
    s_mov_b32 s19, 0x00020000
    s_mov_b32 s20, s8
    s_mov_b32 s21, s9
    s_mov_b32 s22, {16*MB}
    s_mov_b32 s23, 0x00020000
    s_lshl_b32 s27, s2, 2
    s_add_u32 s27, s27, s26
    s_lshl_b32 s27, s27, 3
    v_lshlrev_b32 v3, 4, v1
    buffer_load_dwordx4 v[4:7], v3, s[16:19], 0 offen
    """)
    for r in range(8):
        a(f"s_add_u32 s28, s27, {r}\ns_lshl_b32 s28, s28, 10")
        a(f"buffer_load_dwordx4 {vr(16+4*r,4)}, v3, s[12:15], s28 offen")
    a("s_waitcnt vmcnt(0)")
    for j in range(4):
        a(f"v_lshlrev_b32 {vr(8+2*j)}, 16, {vr(4+j)}\nv_and_b32 {vr(9+2*j)}, 0xffff0000, {vr(4+j)}")
    for r in range(8):
        b = 16+4*r
        a("v_mov_b32 v50, 0")
        for j in range(4):
            a(f"""
            v_lshlrev_b32 v48, 16, {vr(b+j)}
            v_and_b32 v49, 0xffff0000, {vr(b+j)}
            v_mul_f32 v48, v48, {vr(8+2*j)}
            v_mul_f32 v49, v49, {vr(9+2*j)}
            v_cvt_pk_bf16_f32 v51, v48, v49
            v_lshlrev_b32 v48, 16, v51
            v_and_b32 v49, 0xffff0000, v51
            v_add_f32 v50, v50, v48
            v_add_f32 v50, v50, v49
            """)
        a("""
        v_mov_b32 v51, v50
        s_nop 1
        v_permlane32_swap_b32 v50, v51
        v_add_f32 v50, v50, v51
        v_mov_b32 v51, v50
        s_nop 1
        v_permlane16_swap_b32 v50, v51
        v_add_f32 v50, v50, v51
        s_nop 1
        v_add_f32_dpp v50, v50, v50 row_ror:8 row_mask:0xf bank_mask:0xf
        s_nop 1
        v_add_f32_dpp v50, v50, v50 row_ror:4 row_mask:0xf bank_mask:0xf
        s_nop 1
        v_add_f32_dpp v50, v50, v50 row_ror:2 row_mask:0xf bank_mask:0xf
        s_nop 1
        v_add_f32_dpp v50, v50, v50 row_ror:1 row_mask:0xf bank_mask:0xf
        v_cvt_pk_bf16_f32 v50, v50, v50
        v_lshlrev_b32 v50, 16, v50
        v_mul_f32 v50, 0xbfb8aa3b, v50
        v_exp_f32 v50, v50
        s_nop 0
        v_add_f32 v50, 1.0, v50
        v_rcp_f32 v50, v50
        s_nop 0
        v_cvt_pk_bf16_f32 v50, v50, v50
        v_lshlrev_b32 v50, 16, v50
        """)
        a(f"v_writelane_b32 v52, 0, 0" if False else f"v_cmp_eq_u32 vcc, {r}, v1\ns_nop 1\nv_cndmask_b32 v52, v52, v50, vcc")
    a(f"""
    v_cmp_gt_u32 vcc, 8, v1
    s_and_saveexec_b64 s[30:31], vcc
    v_lshlrev_b32 v3, 2, v1
    s_lshl_b32 s28, s27, 2
    s_add_u32 s28, s28, {WS_G}
    buffer_store_dword v52, v3, s[20:23], s28 offen
    s_mov_b64 exec, s[30:31]
    s_waitcnt vmcnt(0)
    """)
    return 56, 0


def kvt_body(a):
    vK = 8; vV = 44; vO = 80
    a(f"""
    s_load_dwordx2 s[4:5], s[0:1], 8
    s_load_dwordx2 s[6:7], s[0:1], 16
    s_load_dwordx2 s[8:9], s[0:1], 24
    s_load_dwordx2 s[10:11], s[0:1], 96
    v_and_b32 v1, 63, v0
    v_lshrrev_b32 v2, 6, v0
    s_nop 0
    v_readfirstlane_b32 s26, v2
    s_waitcnt lgkmcnt(0)
    s_mov_b32 s12, s4
    s_mov_b32 s13, s5
    s_mov_b32 s14, {2048*1024}
    s_mov_b32 s15, 0x00020000
    s_mov_b32 s16, s6
    s_mov_b32 s17, s7
    s_mov_b32 s18, {2048*1024}
    s_mov_b32 s19, 0x00020000
    s_mov_b32 s20, s8
    s_mov_b32 s21, s9
    s_mov_b32 s22, 4096
    s_mov_b32 s23, 0x00020000
    s_mov_b32 s28, s10
    s_mov_b32 s29, s11
    s_mov_b32 s30, {16*MB}
    s_mov_b32 s31, 0x00020000
    s_lshl_b32 s27, s2, 2
    s_add_u32 s27, s27, s26
    s_lshr_b32 s32, s27, 2
    s_and_b32 s33, s27, 3
    s_lshl_b32 s34, s32, 15
    s_lshl_b32 s35, s33, 8
    s_add_u32 s34, s34, s35
    v_lshlrev_b32 v2, 2, v1
    v_add_u32 v3, s34, v2
    v_subrev_u32 v4, 3072, v3
    v_lshl_add_u32 v5, s33, 6, v1
    v_lshlrev_b32 v5, 4, v5
    buffer_load_dwordx4 v[76:79], v5, s[20:23], 0 offen
    """)
    for i in range(3):
        a(f"buffer_load_dword {vr(vK+i)}, v4, s[12:15], 0 offen offset:{1024*i}")
    for i in range(32):
        a(f"s_mov_b32 s36, {(i>>2)*4096}")
        a(f"buffer_load_dword {vr(vK+3+i)}, v3, s[12:15], s36 offen offset:{1024*(i&3)}")
        a(f"buffer_load_dword {vr(vV+i)}, v3, s[16:19], s36 offen offset:{1024*(i&3)}")
    a("s_waitcnt vmcnt(0)")
    for c in range(2):
        a(f"""
        v_lshlrev_b32 {vr(112+4*c)}, 16, {vr(76+2*c)}
        v_and_b32 {vr(113+4*c)}, 0xffff0000, {vr(76+2*c)}
        v_lshlrev_b32 {vr(114+4*c)}, 16, {vr(77+2*c)}
        v_and_b32 {vr(115+4*c)}, 0xffff0000, {vr(77+2*c)}
        """)
    for c in range(2):
        ext = (lambda d, s_: f"v_and_b32 {vr(d)}, 0xffff0000, {vr(s_)}") if c else (lambda d, s_: f"v_lshlrev_b32 {vr(d)}, 16, {vr(s_)}")
        t0,t1,t2,t3 = 112+4*c, 113+4*c, 114+4*c, 115+4*c
        for j in range(3):
            a(ext(120+j, vK+j))
        for i in range(32):
            w = [120+((i+j)%4) for j in range(4)]
            a(ext(w[3], vK+i+3))
            r = 124+(i&1)
            a(f"""
            v_mul_f32 {vr(r)}, {vr(t3)}, {vr(w[0])}
            v_fmac_f32 {vr(r)}, {vr(t2)}, {vr(w[1])}
            v_fmac_f32 {vr(r)}, {vr(t1)}, {vr(w[2])}
            v_fmac_f32 {vr(r)}, {vr(t0)}, {vr(w[3])}
            """)
            if i & 1:
                a(f"""
                v_cvt_pk_bf16_f32 v126, v124, v125
                v_lshlrev_b32 v124, 16, v126
                v_and_b32 v125, 0xffff0000, v126
                """)
                a(ext(126, vV+i-1)); a(ext(127, vV+i))
                a(f"""
                v_mul_f32 v124, v124, v126
                v_mul_f32 v125, v125, v127
                v_cvt_pk_bf16_f32 {vr(vO+16*c+(i>>1))}, v124, v125
                """)
    a(f"""
    v_lshlrev_b32 v5, 13, v1
    s_lshl_b32 s36, s33, 19
    s_lshl_b32 s37, s32, 6
    s_add_u32 s36, s36, s37
    s_add_u32 s36, s36, {WS_KVT}
    s_add_u32 s37, s36, 4096
    """)
    for c in range(2):
        for i in range(4):
            a(f"buffer_store_dwordx4 {vr(vO+16*c+4*i,4)}, v5, s[28:31], s{36+c} offen offset:{16*i}")
    a("s_waitcnt vmcnt(0)")
    return 128, 0
```

```python
import sys
from asmlib import *
from gemm import gemm_body
from attn import attn_body
from conv import conv_body, gate_body, kvt_body
HDR = open("gated_mix__ssm_conv_h3__sliding_block__prompt.s.ref").read().split("; Override launch")[0]
P = "gated_mix__ssm_conv_h3__sliding_block__prompt"
def mk(name, parts):
    a = Asm()
    a.raw(kernel_header(name))
    Lx = f"Lexit_{name}"
    tot = sum(n for _, n in parts)
    a(f"s_cmp_ge_u32 s2, {tot}\ns_cbranch_scc1 {Lx}")
    V, LDS = 0, 0
    for i, (body, n) in enumerate(parts):
        Ln = a.newlabel("Lnext")
        if i < len(parts)-1:
            a(f"s_cmp_ge_u32 s2, {n}\ns_cbranch_scc1 {Ln}")
        v, lds = body(a)
        V = max(V, v); LDS = max(LDS, lds)
        a("s_endpgm")
        if i < len(parts)-1:
            a.label(Ln)
            a(f"s_sub_u32 s2, s2, {n}")
    a.label(Lx)
    a("s_endpgm")
    return a.text(), kernel_desc(name, V), LDS, tot
ks = [
 ("k1_kernel", [(lambda a: gemm_body(a, 'qkv'), 192), (kvt_body, 64), (gate_body, 64)]),
 ("k2_kernel", [(attn_body, 1024), (conv_body, 512)]),
 (P+"_kernel", [(lambda a: gemm_body(a, 'out'), 256)]),
]
texts, descs, launches = [], [], []
for n, parts in ks:
    t, d, lds, w = mk(n, parts)
    texts.append(t); descs.append(d)
    launches.append(f"; @launch kernel={n} grid=({w},1,1) block=(256,1,1) lds={lds}")
out = HDR + "\n".join(launches) + "\n" + '.amdgcn_target "amdgcn-amd-amdhsa--gfx950"\n.text\n' + "".join(texts) + '.section .rodata,"a"\n' + "".join(descs)
open("cdna_kernels/" + P + ".s", "w").write(out)
print(len(out), "bytes")
```

```python
from asmlib import *
from gemm import WS_Q, WS_K, WS_V, WS_O, MB
NEG = "0xce6e6b28"
import os
STAMP = os.environ.get("STAMP")
def attn_body(a):
    sWS = 12
    if STAMP: a("s_memtime s[40:41]")
    vC, vG, vKo, vVo, vT = 2, 3, 4, 5, 6
    vQ = 10; vK = 12; vV = 12; vS = 48; vO = 120; vEnd = 124
    a(f"""
    s_load_dwordx2 s[8:9], s[0:1], 96
    v_and_b32 v1, 63, v0
    v_lshrrev_b32 {vr(vT)}, 6, v0
    s_nop 0
    v_readfirstlane_b32 s26, {vr(vT)}
    s_and_b32 s24, s2, 7
    s_lshl_b32 s24, s24, 2
    s_lshr_b32 s25, s2, 8
    s_add_u32 s24, s24, s25
    s_lshr_b32 s25, s2, 3
    s_and_b32 s25, s25, 31
    s_lshl_b32 s25, s25, 2
    s_add_u32 s25, s25, s26
    s_lshl_b32 s25, s25, 4
    s_waitcnt lgkmcnt(0)
    s_mov_b32 s{sWS}, s8
    s_mov_b32 s{sWS+1}, s9
    s_mov_b32 s{sWS+2}, {16*MB}
    s_mov_b32 s{sWS+3}, 0x00020000
    v_and_b32 {vr(vC)}, 15, v1
    v_lshrrev_b32 {vr(vG)}, 4, v1
    v_lshlrev_b32 {vr(vT)}, 5, {vr(vC)}
    v_lshl_add_u32 {vr(vT)}, {vr(vG)}, 3, {vr(vT)}
    v_lshrrev_b32 {vr(vT+1)}, 2, {vr(vC)}
    v_and_b32 {vr(vT+2)}, 3, {vr(vC)}
    v_lshl_add_u32 {vr(vT+1)}, {vr(vT+1)}, 3, {vr(vT+2)}
    v_lshlrev_b32 {vr(vKo)}, 5, {vr(vT+1)}
    v_lshl_add_u32 {vr(vKo)}, {vr(vG)}, 3, {vr(vKo)}
    v_lshlrev_b32 {vr(vVo)}, 12, {vr(vC)}
    v_lshl_add_u32 {vr(vVo)}, {vr(vG)}, 4, {vr(vVo)}
    s_lshl_b32 s27, s24, 11
    s_add_u32 s27, s27, s25
    s_lshl_b32 s27, s27, 5
    buffer_load_dwordx2 {vr(vQ,2)}, {vr(vT)}, {sr(sWS,4)}, s27 offen
    s_sub_i32 s28, 256, s25
    s_max_i32 s28, s28, 0
    s_lshr_b32 s28, s28, 5
    s_add_u32 s29, s27, {WS_K - 256*32}
    s_lshl_b32 s30, s24, 16
    s_lshl_b32 s31, s25, 1
    s_add_u32 s30, s30, s31
    s_add_u32 s30, s30, {WS_V - 512}
    """)
    for j in range(9):
        L = a.newlabel("Lsk"); L2 = a.newlabel("Lsj")
        a(f"s_cmp_gt_u32 s28, {j}\ns_cbranch_scc1 {L}")
        a(f"s_add_u32 s32, s29, {j*1024}")
        a(f"buffer_load_dwordx2 {vr(vK+4*j,2)}, {vr(vKo)}, {sr(sWS,4)}, s32 offen")
        a(f"buffer_load_dwordx2 {vr(vK+4*j+2,2)}, {vr(vKo)}, {sr(sWS,4)}, s32 offen offset:128")
        a.label(L)
    a("s_waitcnt vmcnt(0)")
    if STAMP: a("s_memtime s[42:43]")
    for j in range(9):
        L = a.newlabel("Lsm"); L2 = a.newlabel("Lsn")
        a(f"s_cmp_gt_u32 s28, {j}\ns_cbranch_scc1 {L}")
        for b in range(2):
            a(f"v_mfma_f32_16x16x16_bf16 {vr(vS+8*j+4*b,4)}, {vr(vK+4*j+2*b,2)}, {vr(vQ,2)}, 0")
        a(f"s_branch {L2}")
        a.label(L)
        for i in range(8):
            a(f"v_mov_b32 {vr(vS+8*j+i)}, {NEG}")
        a.label(L2)
    for j in range(9):
        L = a.newlabel("Lvk"); L2 = a.newlabel("Lvj")
        a(f"s_cmp_gt_u32 s28, {j}\ns_cbranch_scc1 {L}")
        a(f"s_add_u32 s33, s30, {j*64}")
        a(f"buffer_load_dwordx4 {vr(vV+4*j,4)}, {vr(vVo)}, {sr(sWS,4)}, s33 offen")
        a(f"s_branch {L2}")
        a.label(L)
        for i in range(4):
            a(f"v_mov_b32 {vr(vV+4*j+i)}, 0")
        a.label(L2)
    a("s_nop 7\ns_nop 1")
    a(f"v_lshlrev_b32 {vr(vT)}, 3, {vr(vG)}\nv_mov_b32 {vr(vT+1)}, {NEG}")
    for e in range(8):
        a(f"""
        v_add_u32 {vr(vT+2)}, {e}, {vr(vT)}
        v_cmp_lt_u32 vcc, {vr(vC)}, {vr(vT+2)}
        s_nop 1
        v_cndmask_b32 {vr(vS+e)}, {vr(vT+1)}, {vr(vS+e)}, vcc
        v_cndmask_b32 {vr(vS+64+e)}, {vr(vS+64+e)}, {vr(vT+1)}, vcc
        """)
    Lf = a.newlabel("Lfast")
    a(f"""
    s_cmp_ge_u32 s25, 256
    s_cbranch_scc1 {Lf}
    s_bitcmp1_b32 s25, 4
    s_cbranch_scc0 {Lf}
    v_cmp_gt_u32 vcc, 2, {vr(vG)}
    """)
    for j in range(8):
        Ln = a.newlabel("Lnp")
        a(f"s_cmp_lg_u32 s28, {j}\ns_cbranch_scc1 {Ln}")
        for e in range(8):
            a(f"v_cndmask_b32 {vr(vS+8*j+e)}, {vr(vS+8*j+e)}, {vr(vT+1)}, vcc")
        a.label(Ln)
    a.label(Lf)
    a(f"v_max3_f32 {vr(vT)}, {vr(vS)}, {vr(vS+1)}, {vr(vS+2)}")
    a(f"v_max_f32 {vr(vT)}, {vr(vT)}, {vr(vS+3)}")
    for i in range(4, 72, 2):
        a(f"v_max3_f32 {vr(vT)}, {vr(vT)}, {vr(vS+i)}, {vr(vS+i+1)}")
    a(f"""
    v_mov_b32 {vr(vT+1)}, {vr(vT)}
    s_nop 1
    v_permlane32_swap_b32 {vr(vT)}, {vr(vT+1)}
    v_max_f32 {vr(vT)}, {vr(vT)}, {vr(vT+1)}
    v_mov_b32 {vr(vT+1)}, {vr(vT)}
    s_nop 1
    v_permlane16_swap_b32 {vr(vT)}, {vr(vT+1)}
    v_max_f32 {vr(vT)}, {vr(vT)}, {vr(vT+1)}
    s_mov_b32 s34, 0x3eb8aa3b
    v_mul_f32 {vr(vT+2)}, s34, {vr(vT)}
    v_sub_f32 {vr(vT+2)}, 0, {vr(vT+2)}
    """)
    for i in range(72):
        a(f"v_fma_f32 {vr(vS+i)}, {vr(vS+i)}, s34, {vr(vT+2)}")
        a(f"v_exp_f32 {vr(vS+i)}, {vr(vS+i)}")
    a("s_nop 0")
    for t in range(36):
        a(f"v_cvt_pk_bf16_f32 {vr(vS+t)}, {vr(vS+2*t)}, {vr(vS+2*t+1)}")
    for i in range(4):
        a(f"v_mov_b32 {vr(vS+40+i)}, 0x3f803f80")
    if STAMP: a("s_memtime s[44:45]")
    a("s_waitcnt vmcnt(0)")
    if STAMP: a("s_memtime s[46:47]")
    a(f"v_cmp_gt_u32 vcc, 2, {vr(vG)}\nv_mov_b32 {vr(vT+3)}, 0\ns_nop 0")
    for i in range(4):
        a(f"v_cndmask_b32 {vr(vV+32+i)}, {vr(vT+3)}, {vr(vV+32+i)}, vcc")
    a("s_nop 1")
    for j in range(9):
        a(f"v_mfma_f32_16x16x32_bf16 {vr(vO,4)}, {vr(vV+4*j,4)}, {vr(vS+4*j,4)}, {'0' if j==0 else vr(vO,4)}")
        a(f"v_mfma_f32_16x16x32_bf16 {vr(vS+44,4)}, {vr(vS+40,4)}, {vr(vS+4*j,4)}, {'0' if j==0 else vr(vS+44,4)}")
    a("s_nop 7\ns_nop 1")
    a(f"v_rcp_f32 {vr(vT)}, {vr(vS+44)}\ns_nop 0")
    for i in range(4):
        a(f"v_mul_f32 {vr(vO+i)}, {vr(vO+i)}, {vr(vT)}")
    a(f"""
    v_cvt_pk_bf16_f32 {vr(vO)}, {vr(vO)}, {vr(vO+1)}
    v_cvt_pk_bf16_f32 {vr(vO+1)}, {vr(vO+2)}, {vr(vO+3)}
    v_lshlrev_b32 {vr(vKo)}, 10, {vr(vC)}
    v_lshl_add_u32 {vr(vKo)}, {vr(vG)}, 3, {vr(vKo)}
    s_lshl_b32 s32, s25, 10
    s_lshl_b32 s33, s24, 5
    s_add_u32 s32, s32, s33
    s_add_u32 s32, s32, {WS_O}
    buffer_store_dwordx2 {vr(vO,2)}, {vr(vKo)}, {sr(sWS,4)}, s32 offen
    """)
    if STAMP:
        a("""
        s_memtime s[48:49]
        s_load_dwordx2 s[50:51], s[0:1], 88
        s_waitcnt lgkmcnt(0)
        s_sub_u32 s42, s42, s40
        s_sub_u32 s44, s44, s40
        s_sub_u32 s46, s46, s40
        s_sub_u32 s48, s48, s40
        s_mov_b32 s52, s50
        s_mov_b32 s53, s51
        s_mov_b32 s54, 256
        s_mov_b32 s55, 0x00020000
        v_mov_b32 v10, s42
        v_mov_b32 v11, s44
        v_mov_b32 v12, s46
        v_mov_b32 v13, s48
        s_lshr_b32 s56, s2, 7
        s_lshl_b32 s56, s56, 4
        s_and_b32 s57, s2, 127
        s_cmp_eq_u32 s57, 77
        s_cbranch_scc0 Lnostamp
        s_cmp_eq_u32 s26, 0
        s_cbranch_scc0 Lnostamp
        v_mov_b32 v14, 0
        buffer_store_dwordx4 v[10:13], v14, s[52:55], s56 offen
        s_waitcnt vmcnt(0)
        Lnostamp:
        """)
    return vEnd, 0
```

```python
from asmlib import *
from gemm import WS_Y2T, WS_G, MB
WS_KVT = 12*MB

KVSZ = 80*127
HCP = 4160
CH = KVSZ + 4*HCP
CONV_LDS = CH

def conv_body(a):
    sK, sV, sH, sWS = 12, 16, 20, 24
    vT = 2
    vKr = 10
    vVr = 22
    vKf = 32
    vVf = 56
    vP = 72
    vKV = 76
    vA = 10; vB1 = 26; vB0 = 42; vAcc = 64
    vHr = 84
    vHo = 104
    vEnd = 128
    a(f"""
    s_load_dwordx2 s[4:5], s[0:1], 8
    s_load_dwordx2 s[6:7], s[0:1], 16
    s_load_dwordx2 s[8:9], s[0:1], 24
    s_load_dwordx2 s[10:11], s[0:1], 32
    s_load_dwordx2 s[58:59], s[0:1], 40
    s_load_dwordx2 s[60:61], s[0:1], 96
    v_and_b32 v1, 63, v0
    v_lshrrev_b32 {vr(vT)}, 6, v0
    s_nop 0
    v_readfirstlane_b32 s62, {vr(vT)}
    s_mov_b32 s63, s2
    s_waitcnt lgkmcnt(0)
    s_and_b32 s64, s63, 0xffe
    s_lshl_b32 s64, s64, 1
    s_add_u32 s58, s58, s64
    s_addc_u32 s59, s59, 0
    s_load_dword s52, s[58:59], 0
    s_mov_b32 s67, 0
    s_and_b32 s72, s63, 1
    s_mov_b32 s{sK}, s4
    s_mov_b32 s{sK+1}, s5
    s_mov_b32 s{sK+2}, {2048*1024}
    s_mov_b32 s{sK+3}, 0x00020000
    s_mov_b32 s{sV}, s6
    s_mov_b32 s{sV+1}, s7
    s_mov_b32 s{sV+2}, {2048*1024}
    s_mov_b32 s{sV+3}, 0x00020000
    s_mov_b32 s{sH}, s10
    s_mov_b32 s{sH+1}, s11
    s_mov_b32 s{sH+2}, {512*4096}
    s_mov_b32 s{sH+3}, 0x00020000
    s_mov_b32 s{sWS}, s60
    s_mov_b32 s{sWS+1}, s61
    s_mov_b32 s{sWS+2}, {16*MB}
    s_mov_b32 s{sWS+3}, 0x00020000
    v_lshlrev_b32 {vr(vT)}, 13, v0
    s_lshl_b32 s64, s63, 1
    v_add_u32 {vr(vT)}, s64, {vr(vT)}
    v_add_u32 {vr(vT+1)}, 4096, {vr(vT)}
    v_subrev_u32 {vr(vT+2)}, 3072, {vr(vT)}
    s_add_u32 s64, s63, s67
    s_lshl_b32 s65, s64, 12
    v_lshlrev_b32 {vr(vT+3)}, 6, v1
    v_subrev_u32 {vr(vT+4)}, 8, {vr(vT+3)}
    v_add_u32 {vr(vT+4)}, s65, {vr(vT+4)}
    buffer_load_dwordx2 {vr(vHr,2)}, {vr(vT+4)}, {sr(sH,4)}, 0 offen
    """)
    for i in range(4):
        a(f"buffer_load_dwordx4 {vr(vHr+2+4*i,4)}, {vr(vT+3)}, {sr(sH,4)}, s65 offen offset:{16*i}")
    a(f"""
    v_lshlrev_b32 {vr(vT+5)}, 4, v0
    s_add_u32 s71, s65, {WS_KVT}
    buffer_load_dwordx4 {vr(vKV,4)}, {vr(vT+5)}, {sr(sWS,4)}, s71 offen
    """)
    a(f"""
    s_mul_i32 s66, s67, {CH}
    v_mov_b32 {vr(vP)}, 0
    v_mov_b32 {vr(vP+1)}, 0
    v_mov_b32 {vr(vP+2)}, 0
    v_mov_b32 {vr(vP+3)}, 0
    v_mul_u32_u24 {vr(vT+5)}, 80, v1
    v_add_u32 {vr(vT+5)}, s66, {vr(vT+5)}
    """)
    for i in range(5):
        a(f"ds_write_b128 {vr(vT+5)}, {vr(vP,4)} offset:{16*i}")
    a(f"""
    v_and_b32 {vr(vT+6)}, 3, v1
    v_lshlrev_b32 {vr(vT+6)}, 4, {vr(vT+6)}
    v_add_u32 {vr(vT+6)}, s66, {vr(vT+6)}
    """)
    for p in range(4):
        a(f"ds_write_b128 {vr(vT+6)}, {vr(vP,4)} offset:{KVSZ+p*HCP+4096}")
    a("s_waitcnt lgkmcnt(0)\ns_barrier")
    a("""
    s_lshl_b32 s54, s52, 16
    s_and_b32 s55, s52, 0xffff0000
    s_cmp_eq_u32 s72, 1
    s_cselect_b32 s54, s55, s54
    s_waitcnt vmcnt(0)
    v_cmp_eq_u32 vcc, 0, v1
    s_nop 1
    """)
    a(f"v_cndmask_b32 {vr(vHr)}, {vr(vHr)}, 0, vcc\nv_cndmask_b32 {vr(vHr+1)}, {vr(vHr+1)}, 0, vcc" if False else
      f"v_mov_b32 {vr(vT+7)}, 0\nv_cndmask_b32 {vr(vHr)}, {vr(vHr)}, {vr(vT+7)}, vcc\nv_cndmask_b32 {vr(vHr+1)}, {vr(vHr+1)}, {vr(vT+7)}, vcc")
    R = vKf
    for j in range(18):
        a(f"v_alignbit_b32 {vr(R+j)}, {vr(vHr+17-j)}, {vr(vHr+17-j)}, 16")
    a(f"""
    v_lshlrev_b32 {vr(vT+4)}, 6, v1
    v_sub_u32 {vr(vT+4)}, 4032, {vr(vT+4)}
    """)
    Ld = a.newlabel("Lhd")
    for p in range(4):
        Ln = a.newlabel("Lhp")
        a(f"s_cmp_lg_u32 s62, {p}\ns_cbranch_scc1 {Ln}")
        for j in range(16):
            if p & 1:
                a(f"v_alignbit_b32 {vr(vHo+j)}, {vr(R+j+(p>>1)+1)}, {vr(R+j+(p>>1))}, 16")
            else:
                a(f"v_mov_b32 {vr(vHo+j)}, {vr(R+j+(p>>1))}")
        for i in range(4):
            a(f"ds_write_b128 {vr(vT+4)}, {vr(vHo+4*i,4)} offset:{KVSZ+p*HCP+16*i}")
        a(f"s_branch {Ld}")
        a.label(Ln)
    a.label(Ld)
    a("s_waitcnt lgkmcnt(0)")
    a(f"""
    v_lshrrev_b32 {vr(vT+1)}, 2, v0
    v_mul_u32_u24 {vr(vT+1)}, 80, {vr(vT+1)}
    v_and_b32 {vr(vT)}, 3, v0
    v_lshl_add_u32 {vr(vT)}, {vr(vT)}, 4, {vr(vT+1)}
    ds_write_b128 {vr(vT)}, {vr(vKV,4)} offset:{80*63}
    s_waitcnt lgkmcnt(0)
    s_barrier
    """)
    a(f"""
    v_and_b32 {vr(vT+3)}, 31, v1
    v_lshrrev_b32 {vr(vT+4)}, 5, v1
    v_sub_u32 {vr(vT)}, 31, {vr(vT+3)}
    v_and_b32 {vr(vT+5)}, 3, {vr(vT)}
    v_sub_u32 {vr(vT)}, {vr(vT)}, {vr(vT+5)}
    v_lshlrev_b32 {vr(vT)}, 1, {vr(vT)}
    v_lshl_add_u32 {vr(vT)}, {vr(vT+4)}, 4, {vr(vT)}
    v_mul_u32_u24 {vr(vT+5)}, {HCP}, {vr(vT+5)}
    v_add3_u32 {vr(vT)}, {vr(vT)}, {vr(vT+5)}, s66
    v_mul_u32_u24 {vr(vT+1)}, 80, {vr(vT+3)}
    v_lshl_add_u32 {vr(vT+1)}, {vr(vT+4)}, 4, {vr(vT+1)}
    v_add_u32 {vr(vT+1)}, s66, {vr(vT+1)}
    """)
    for i in range(32):
        a(f"v_mov_b32 {vr(vAcc+i)}, 0")
    def rd(task, st):
        g, m = task
        for ks in range(2):
            o = KVSZ + 64*(63-m) + 32*ks
            a(f"ds_read_b64 {vr(vA+(st*2+ks)*4,2)}, {vr(vT)} offset:{o}")
            a(f"ds_read_b64 {vr(vA+(st*2+ks)*4+2,2)}, {vr(vT)} offset:{o+8}")
        for ks in range(2):
            a(f"ds_read_b128 {vr(vB1+(st*2+ks)*4,4)}, {vr(vT+1)} offset:{80*(32*g+63-m) + 32*ks}")
        return 6
    def run(tasks):
        rd(tasks[0], 0)
        for i, (g, m) in enumerate(tasks):
            st = i & 1
            if i+1 < len(tasks):
                rd(tasks[i+1], st ^ 1)
                a("s_waitcnt lgkmcnt(6)")
            else:
                a("s_waitcnt lgkmcnt(0)")
            for ks in range(2):
                acc = vr(vAcc+16*g,16)
                a(f"v_mfma_f32_32x32x16_bf16 {acc}, {vr(vA+(st*2+ks)*4,4)}, {vr(vB1+(st*2+ks)*4,4)}, {acc}")
    T = [(0, m) for m in range(32)] + [(1, m) for m in range(64)]
    L2 = a.newlabel("Lc2"); Lend = a.newlabel("Lce")
    a(f"v_lshlrev_b32 {vr(vT+5)}, 4, v1")
    for w in range(4):
        Ln = a.newlabel("Lcw")
        if w < 3:
            a(f"s_cmp_lg_u32 s62, {w}\ns_cbranch_scc1 {Ln}")
        run(T[24*w:24*w+24])
        a("s_nop 7\ns_nop 7\ns_barrier")
        if w == 1:
            for i in range(4):
                a(f"ds_write_b128 {vr(vT+5)}, {vr(vAcc+4*i,4)} offset:{KVSZ+1024*i}")
                a(f"ds_write_b128 {vr(vT+5)}, {vr(vAcc+16+4*i,4)} offset:{KVSZ+4096+1024*i}")
        if w == 2:
            for i in range(4):
                a(f"ds_write_b128 {vr(vT+5)}, {vr(vAcc+16+4*i,4)} offset:{KVSZ+8192+1024*i}")
        a("s_waitcnt lgkmcnt(0)\ns_barrier")
        if w in (1, 2):
            a(f"s_branch {Lend}")
        if w == 0:
            for i in range(4):
                a(f"ds_read_b128 {vr(vAcc+16+4*i,4)}, {vr(vT+5)} offset:{KVSZ+1024*i}")
            a("s_waitcnt lgkmcnt(0)")
            for i in range(16):
                a(f"v_add_f32 {vr(vAcc+i)}, {vr(vAcc+i)}, {vr(vAcc+16+i)}")
            a(f"s_mov_b32 s69, 0\ns_branch {L2}")
        if w == 3:
            for i in range(4):
                a(f"ds_read_b128 {vr(vAcc+4*i,4)}, {vr(vT+5)} offset:{KVSZ+4096+1024*i}")
                a(f"ds_read_b128 {vr(vHo+4*i,4)}, {vr(vT+5)} offset:{KVSZ+8192+1024*i}")
            a("s_waitcnt lgkmcnt(0)")
            for i in range(16):
                a(f"v_add_f32 {vr(vAcc+i)}, {vr(vAcc+i)}, {vr(vAcc+16+i)}")
                a(f"v_add_f32 {vr(vAcc+i)}, {vr(vAcc+i)}, {vr(vHo+i)}")
            a("s_mov_b32 s69, 1")
        if w < 3:
            a.label(Ln)
    a.label(L2)
    a(f"""
    s_mul_i32 s70, s69, {80*32}
    s_add_u32 s70, s70, s66
    v_mul_u32_u24 {vr(vT+1)}, 80, {vr(vT+3)}
    v_lshl_add_u32 {vr(vT+1)}, {vr(vT+4)}, 3, {vr(vT+1)}
    v_add_u32 {vr(vT+1)}, s70, {vr(vT+1)}
    v_lshlrev_b32 {vr(vT+2)}, 6, {vr(vT+3)}
    v_lshl_add_u32 {vr(vT+2)}, {vr(vT+4)}, 3, {vr(vT+2)}
    s_lshl_b32 s70, s69, 11
    s_add_u32 s65, s65, s70
    s_add_u32 s65, s65, {WS_Y2T}
    """)
    for q in range(4):
        a(f"ds_read_b64 {vr(vA+2*q,2)}, {vr(vT+1)} offset:{80*63 + 16*q}")
    a("s_waitcnt lgkmcnt(0)")
    for q in range(4):
        r = vAcc + 4*q
        kvr = vA + 2*q
        a(f"v_cvt_pk_bf16_f32 {vr(vB1)}, {vr(r)}, {vr(r+1)}\nv_cvt_pk_bf16_f32 {vr(vB1+1)}, {vr(r+2)}, {vr(r+3)}")
        for i in range(4):
            src = kvr + (i>>1); ys = vB1 + (i>>1)
            t = vB0 + i; y = vB0 + 4 + i
            a((f"v_and_b32 {vr(t)}, 0xffff0000, {vr(src)}\nv_and_b32 {vr(y)}, 0xffff0000, {vr(ys)}") if i&1 else
              f"v_lshlrev_b32 {vr(t)}, 16, {vr(src)}\nv_lshlrev_b32 {vr(y)}, 16, {vr(ys)}")
            a(f"v_mul_f32 {vr(t)}, s54, {vr(t)}")
        a(f"""
        v_cvt_pk_bf16_f32 {vr(vB1+2)}, {vr(vB0)}, {vr(vB0+1)}
        v_cvt_pk_bf16_f32 {vr(vB1+3)}, {vr(vB0+2)}, {vr(vB0+3)}
        v_lshlrev_b32 {vr(vB0)}, 16, {vr(vB1+2)}
        v_and_b32 {vr(vB0+1)}, 0xffff0000, {vr(vB1+2)}
        v_lshlrev_b32 {vr(vB0+2)}, 16, {vr(vB1+3)}
        v_and_b32 {vr(vB0+3)}, 0xffff0000, {vr(vB1+3)}
        v_add_f32 {vr(vB0)}, {vr(vB0)}, {vr(vB0+4)}
        v_add_f32 {vr(vB0+1)}, {vr(vB0+1)}, {vr(vB0+5)}
        v_add_f32 {vr(vB0+2)}, {vr(vB0+2)}, {vr(vB0+6)}
        v_add_f32 {vr(vB0+3)}, {vr(vB0+3)}, {vr(vB0+7)}
        v_cvt_pk_bf16_f32 {vr(vB1+4+2*(q&1))}, {vr(vB0)}, {vr(vB0+1)}
        v_cvt_pk_bf16_f32 {vr(vB1+5+2*(q&1))}, {vr(vB0+2)}, {vr(vB0+3)}
        buffer_store_dwordx2 {vr(vB1+4+2*(q&1),2)}, {vr(vT+2)}, {sr(sWS,4)}, s65 offen offset:{16*q}
        s_nop 1
        """)
    a.label(Lend)
    return vEnd, CONV_LDS

def gate_body(a):
    a(f"""
    s_load_dwordx2 s[4:5], s[0:1], 0
    s_load_dwordx2 s[6:7], s[0:1], 72
    s_load_dwordx2 s[8:9], s[0:1], 96
    v_and_b32 v1, 63, v0
    v_lshrrev_b32 v2, 6, v0
    s_nop 0
    v_readfirstlane_b32 s26, v2
    s_waitcnt lgkmcnt(0)
    s_mov_b32 s12, s4
    s_mov_b32 s13, s5
    s_mov_b32 s14, {2048*1024}
    s_mov_b32 s15, 0x00020000
    s_mov_b32 s16, s6
    s_mov_b32 s17, s7
    s_mov_b32 s18, 1024
    s_mov_b32 s19, 0x00020000
    s_mov_b32 s20, s8
    s_mov_b32 s21, s9
    s_mov_b32 s22, {16*MB}
    s_mov_b32 s23, 0x00020000
    s_lshl_b32 s27, s2, 2
    s_add_u32 s27, s27, s26
    s_lshl_b32 s27, s27, 3
    v_lshlrev_b32 v3, 4, v1
    buffer_load_dwordx4 v[4:7], v3, s[16:19], 0 offen
    """)
    for r in range(8):
        a(f"s_add_u32 s28, s27, {r}\ns_lshl_b32 s28, s28, 10")
        a(f"buffer_load_dwordx4 {vr(16+4*r,4)}, v3, s[12:15], s28 offen")
    a("s_waitcnt vmcnt(0)")
    for j in range(4):
        a(f"v_lshlrev_b32 {vr(8+2*j)}, 16, {vr(4+j)}\nv_and_b32 {vr(9+2*j)}, 0xffff0000, {vr(4+j)}")
    for r in range(8):
        b = 16+4*r
        a("v_mov_b32 v50, 0")
        for j in range(4):
            a(f"""
            v_lshlrev_b32 v48, 16, {vr(b+j)}
            v_and_b32 v49, 0xffff0000, {vr(b+j)}
            v_mul_f32 v48, v48, {vr(8+2*j)}
            v_mul_f32 v49, v49, {vr(9+2*j)}
            v_cvt_pk_bf16_f32 v51, v48, v49
            v_lshlrev_b32 v48, 16, v51
            v_and_b32 v49, 0xffff0000, v51
            v_add_f32 v50, v50, v48
            v_add_f32 v50, v50, v49
            """)
        a("""
        v_mov_b32 v51, v50
        s_nop 1
        v_permlane32_swap_b32 v50, v51
        v_add_f32 v50, v50, v51
        v_mov_b32 v51, v50
        s_nop 1
        v_permlane16_swap_b32 v50, v51
        v_add_f32 v50, v50, v51
        s_nop 1
        v_add_f32_dpp v50, v50, v50 row_ror:8 row_mask:0xf bank_mask:0xf
        s_nop 1
        v_add_f32_dpp v50, v50, v50 row_ror:4 row_mask:0xf bank_mask:0xf
        s_nop 1
        v_add_f32_dpp v50, v50, v50 row_ror:2 row_mask:0xf bank_mask:0xf
        s_nop 1
        v_add_f32_dpp v50, v50, v50 row_ror:1 row_mask:0xf bank_mask:0xf
        v_cvt_pk_bf16_f32 v50, v50, v50
        v_lshlrev_b32 v50, 16, v50
        v_mul_f32 v50, 0xbfb8aa3b, v50
        v_exp_f32 v50, v50
        s_nop 0
        v_add_f32 v50, 1.0, v50
        v_rcp_f32 v50, v50
        s_nop 0
        v_cvt_pk_bf16_f32 v50, v50, v50
        v_lshlrev_b32 v50, 16, v50
        """)
        a(f"v_writelane_b32 v52, 0, 0" if False else f"v_cmp_eq_u32 vcc, {r}, v1\ns_nop 1\nv_cndmask_b32 v52, v52, v50, vcc")
    a(f"""
    v_cmp_gt_u32 vcc, 8, v1
    s_and_saveexec_b64 s[30:31], vcc
    v_lshlrev_b32 v3, 2, v1
    s_lshl_b32 s28, s27, 2
    s_add_u32 s28, s28, {WS_G}
    buffer_store_dword v52, v3, s[20:23], s28 offen
    s_mov_b64 exec, s[30:31]
    """)
    return 56, 0


def kvt_body(a):
    vK = 8; vV = 44; vO = 80
    a(f"""
    s_load_dwordx2 s[4:5], s[0:1], 8
    s_load_dwordx2 s[6:7], s[0:1], 16
    s_load_dwordx2 s[8:9], s[0:1], 24
    s_load_dwordx2 s[10:11], s[0:1], 96
    v_and_b32 v1, 63, v0
    v_lshrrev_b32 v2, 6, v0
    s_nop 0
    v_readfirstlane_b32 s26, v2
    s_waitcnt lgkmcnt(0)
    s_mov_b32 s12, s4
    s_mov_b32 s13, s5
    s_mov_b32 s14, {2048*1024}
    s_mov_b32 s15, 0x00020000
    s_mov_b32 s16, s6
    s_mov_b32 s17, s7
    s_mov_b32 s18, {2048*1024}
    s_mov_b32 s19, 0x00020000
    s_mov_b32 s20, s8
    s_mov_b32 s21, s9
    s_mov_b32 s22, 4096
    s_mov_b32 s23, 0x00020000
    s_mov_b32 s28, s10
    s_mov_b32 s29, s11
    s_mov_b32 s30, {16*MB}
    s_mov_b32 s31, 0x00020000
    s_lshl_b32 s27, s2, 2
    s_add_u32 s27, s27, s26
    s_lshr_b32 s32, s27, 2
    s_and_b32 s33, s27, 3
    s_lshl_b32 s34, s32, 15
    s_lshl_b32 s35, s33, 8
    s_add_u32 s34, s34, s35
    v_lshlrev_b32 v2, 2, v1
    v_add_u32 v3, s34, v2
    v_subrev_u32 v4, 3072, v3
    v_lshl_add_u32 v5, s33, 6, v1
    v_lshlrev_b32 v5, 4, v5
    buffer_load_dwordx4 v[76:79], v5, s[20:23], 0 offen
    """)
    for i in range(3):
        a(f"buffer_load_dword {vr(vK+i)}, v4, s[12:15], 0 offen offset:{1024*i}")
    for i in range(32):
        a(f"s_mov_b32 s36, {(i>>2)*4096}")
        a(f"buffer_load_dword {vr(vK+3+i)}, v3, s[12:15], s36 offen offset:{1024*(i&3)}")
        a(f"buffer_load_dword {vr(vV+i)}, v3, s[16:19], s36 offen offset:{1024*(i&3)}")
    a("s_waitcnt vmcnt(0)")
    for c in range(2):
        a(f"""
        v_lshlrev_b32 {vr(112+4*c)}, 16, {vr(76+2*c)}
        v_and_b32 {vr(113+4*c)}, 0xffff0000, {vr(76+2*c)}
        v_lshlrev_b32 {vr(114+4*c)}, 16, {vr(77+2*c)}
        v_and_b32 {vr(115+4*c)}, 0xffff0000, {vr(77+2*c)}
        """)
    for c in range(2):
        ext = (lambda d, s_: f"v_and_b32 {vr(d)}, 0xffff0000, {vr(s_)}") if c else (lambda d, s_: f"v_lshlrev_b32 {vr(d)}, 16, {vr(s_)}")
        t0,t1,t2,t3 = 112+4*c, 113+4*c, 114+4*c, 115+4*c
        for j in range(3):
            a(ext(120+j, vK+j))
        for i in range(32):
            w = [120+((i+j)%4) for j in range(4)]
            a(ext(w[3], vK+i+3))
            r = 124+(i&1)
            a(f"""
            v_mul_f32 {vr(r)}, {vr(t3)}, {vr(w[0])}
            v_fmac_f32 {vr(r)}, {vr(t2)}, {vr(w[1])}
            v_fmac_f32 {vr(r)}, {vr(t1)}, {vr(w[2])}
            v_fmac_f32 {vr(r)}, {vr(t0)}, {vr(w[3])}
            """)
            if i & 1:
                a(f"""
                v_cvt_pk_bf16_f32 v126, v124, v125
                v_lshlrev_b32 v124, 16, v126
                v_and_b32 v125, 0xffff0000, v126
                """)
                a(ext(126, vV+i-1)); a(ext(127, vV+i))
                a(f"""
                v_mul_f32 v124, v124, v126
                v_mul_f32 v125, v125, v127
                v_cvt_pk_bf16_f32 {vr(vO+16*c+(i>>1))}, v124, v125
                """)
    a(f"""
    v_lshlrev_b32 v5, 13, v1
    s_lshl_b32 s36, s33, 19
    s_lshl_b32 s37, s32, 6
    s_add_u32 s36, s36, s37
    s_add_u32 s36, s36, {WS_KVT}
    s_add_u32 s37, s36, 4096
    """)
    for c in range(2):
        for i in range(4):
            a(f"buffer_store_dwordx4 {vr(vO+16*c+4*i,4)}, v5, s[28:31], s{36+c} offen offset:{16*i}")
    return 128, 0
```

```python
from asmlib import *

MB = 1 << 20
WS_Q, WS_K, WS_V, WS_O, WS_Y2T, WS_G = 0, 2*MB, 4*MB, 6*MB, 8*MB, 10*MB
WS_BYTES = 268435456

def gemm_body(a, kind):
    if kind == 'qkv':
        TM, TN, WROW = 128, 128, 1536*2
    else:
        TM, TN, WROW = 64, 64, 512*2
    MT, NT = TM // 64, TN // 64
    XSTR = 144
    WSTR = TN*2 + 64
    XS = TM * XSTR
    WSZ = 64 * WSTR
    BUF = XS + WSZ
    XP = TM // 32
    WTPR = TN*2 // 16
    WRPP = 256 // WTPR
    WP = 64 // WRPP
    sX, sW, sWS = 12, 16, 20
    vXo = 2
    vWo = vXo + XP
    vXl = vWo + WP
    vWl = vXl + 1
    vAr = vWl + 1
    vBr = vAr + 1
    vT = vBr + 1
    base = (vT + 4 + 3)//4*4
    NPF = 3 if kind == 'qkv' else 8
    SSZ = (XP+WP)*4
    vSX = base
    vSW = vSX + XP*4
    vFA = vSX + NPF*SSZ
    vFB = vFA + 2*MT*4
    vAcc = vFB + 2*NT*4
    vGt = vAcc + MT*NT*16
    vQr = vGt + 16
    vY = vQr + 16
    vE = vY + 8
    vEnd = vE + 4
    a(f"""
    s_load_dwordx2 s[4:5], s[0:1], 0
    s_load_dwordx2 s[6:7], s[0:1], {56 if kind=='qkv' else 64}
    s_load_dwordx2 s[8:9], s[0:1], 96
    """)
    if kind == 'qkv':
        a("s_and_b32 s24, s2, 15\ns_lshr_b32 s25, s2, 4")
    else:
        a("s_and_b32 s24, s2, 31\ns_lshr_b32 s25, s2, 5")
    a(f"""
    v_and_b32 v1, 63, v0
    v_lshrrev_b32 {vr(vT)}, 6, v0
    s_nop 0
    v_readfirstlane_b32 s26, {vr(vT)}
    s_waitcnt lgkmcnt(0)
    s_and_b32 s27, s26, 1
    s_lshr_b32 s28, s26, 1
    """)
    if kind == 'qkv':
        a(f"""
        s_mov_b32 s{sX}, s4
        s_mov_b32 s{sX+1}, s5
        s_mov_b32 s{sX+2}, {2048*1024}
        s_mov_b32 s{sX+3}, 0x00020000
        s_mov_b32 s{sW}, s6
        s_mov_b32 s{sW+1}, s7
        s_mov_b32 s{sW+2}, {512*1536*2}
        s_mov_b32 s{sW+3}, 0x00020000
        """)
    else:
        a(f"""
        s_add_u32 s{sX}, s8, {WS_O}
        s_addc_u32 s{sX+1}, s9, 0
        s_mov_b32 s{sX+2}, {2048*1024}
        s_mov_b32 s{sX+3}, 0x00020000
        s_mov_b32 s{sW}, s6
        s_mov_b32 s{sW+1}, s7
        s_mov_b32 s{sW+2}, {512*512*2}
        s_mov_b32 s{sW+3}, 0x00020000
        """)
    a(f"""
    s_mov_b32 s{sWS}, s8
    s_mov_b32 s{sWS+1}, s9
    s_mov_b32 s{sWS+2}, {16*MB}
    s_mov_b32 s{sWS+3}, 0x00020000
    """)
    a(f"""
    v_lshrrev_b32 {vr(vT)}, 3, v0
    v_and_b32 {vr(vT+1)}, 7, v0
    s_lshl_b32 s29, s24, {7 if TM==128 else 6}
    v_add_u32 {vr(vT+2)}, s29, {vr(vT)}
    v_lshlrev_b32 {vr(vT+2)}, 10, {vr(vT+2)}
    v_lshl_add_u32 {vr(vXo)}, {vr(vT+1)}, 4, {vr(vT+2)}
    """)
    for p in range(1, XP):
        a(f"v_add_u32 {vr(vXo+p)}, {p*32*1024}, {vr(vXo)}")
    a(f"""
    v_mul_u32_u24 {vr(vT+2)}, {XSTR}, {vr(vT)}
    v_lshl_add_u32 {vr(vXl)}, {vr(vT+1)}, 4, {vr(vT+2)}
    """)
    sh = {16:4, 8:3}[WTPR]
    a(f"""
    v_lshrrev_b32 {vr(vT)}, {sh}, v0
    v_and_b32 {vr(vT+1)}, {WTPR-1}, v0
    s_mov_b32 s30, {WROW}
    v_mul_lo_u32 {vr(vT+2)}, s30, {vr(vT)}
    v_lshl_add_u32 {vr(vT+2)}, {vr(vT+1)}, 4, {vr(vT+2)}
    s_lshl_b32 s29, s25, {8 if TN==128 else 7}
    v_add_u32 {vr(vWo)}, s29, {vr(vT+2)}
    """)
    for p in range(1, WP):
        a(f"v_add_u32 {vr(vWo+p)}, {p*WRPP*WROW}, {vr(vWo)}")
    a(f"""
    v_mul_u32_u24 {vr(vT+2)}, {WSTR}, {vr(vT)}
    v_lshl_add_u32 {vr(vWl)}, {vr(vT+1)}, 4, {vr(vT+2)}
    v_add_u32 {vr(vWl)}, {XS}, {vr(vWl)}
    """)
    a(f"""
    v_and_b32 {vr(vT)}, 31, v1
    s_mul_i32 s29, s28, {TM//2}
    v_add_u32 {vr(vT)}, s29, {vr(vT)}
    v_mul_u32_u24 {vr(vT)}, {XSTR}, {vr(vT)}
    v_lshrrev_b32 {vr(vT+1)}, 5, v1
    v_lshl_add_u32 {vr(vAr)}, {vr(vT+1)}, 4, {vr(vT)}
    """)
    a(f"""
    v_lshrrev_b32 {vr(vT)}, 5, v1
    v_lshlrev_b32 {vr(vT)}, 3, {vr(vT)}
    v_bfe_u32 {vr(vT+1)}, v1, 2, 2
    v_add_u32 {vr(vT)}, {vr(vT)}, {vr(vT+1)}
    v_mul_u32_u24 {vr(vT)}, {WSTR}, {vr(vT)}
    v_bfe_u32 {vr(vT+1)}, v1, 4, 1
    v_lshlrev_b32 {vr(vT+1)}, 5, {vr(vT+1)}
    v_and_b32 {vr(vT+2)}, 3, v1
    v_lshlrev_b32 {vr(vT+2)}, 3, {vr(vT+2)}
    v_add3_u32 {vr(vT)}, {vr(vT)}, {vr(vT+1)}, {vr(vT+2)}
    s_mul_i32 s29, s27, {TN}
    s_add_u32 s29, s29, {XS}
    v_add_u32 {vr(vBr)}, s29, {vr(vT)}
    """)
    def gload(c):
        o = (c % NPF)*SSZ
        a(f"s_mov_b32 s31, {c*128}")
        a(f"s_mov_b32 s32, {c*64*WROW}")
        for p in range(XP):
            a(f"buffer_load_dwordx4 {vr(vSX+o+4*p,4)}, {vr(vXo+p)}, {sr(sX,4)}, s31 offen")
        for p in range(WP):
            a(f"buffer_load_dwordx4 {vr(vSW+o+4*p,4)}, {vr(vWo+p)}, {sr(sW,4)}, s32 offen")
    def lstore(c):
        buf = c & 1
        o = (c % NPF)*SSZ
        for p in range(XP):
            a(f"ds_write_b128 {vr(vXl)}, {vr(vSX+o+4*p,4)} offset:{buf*BUF + p*32*XSTR}")
        for p in range(WP):
            a(f"ds_write_b128 {vr(vWl)}, {vr(vSW+o+4*p,4)} offset:{buf*BUF + p*WRPP*WSTR}")
    def fread(buf, ks, st):
        for mt in range(MT):
            a(f"ds_read_b128 {vr(vFA+(st*MT+mt)*4,4)}, {vr(vAr)} offset:{buf*BUF + mt*32*XSTR + ks*32}")
        for nt in range(NT):
            o = buf*BUF + ks*16*WSTR + nt*64
            a(f"ds_read_b64_tr_b16 {vr(vFB+(st*NT+nt)*4,2)}, {vr(vBr)} offset:{o}")
            a(f"ds_read_b64_tr_b16 {vr(vFB+(st*NT+nt)*4+2,2)}, {vr(vBr)} offset:{o+4*WSTR}")
    NRD = MT + 2*NT
    def mainloop(swap):
        for i in range(MT*NT*16):
            a(f"v_mov_b32 {vr(vAcc+i)}, 0")
        issued = 0
        for c in range(min(NPF, 8)):
            gload(c); issued = c+1
        a(f"s_waitcnt vmcnt({(issued-1)*(XP+WP)})")
        lstore(0)
        a("s_waitcnt lgkmcnt(0)\ns_barrier")
        for c in range(8):
            buf = c & 1
            if issued < 8:
                gload(issued); issued += 1
            fread(buf, 0, 0)
            for ks in range(4):
                st = ks & 1
                if ks < 3:
                    fread(buf, ks+1, st ^ 1)
                    a(f"s_waitcnt lgkmcnt({NRD})")
                else:
                    a("s_waitcnt lgkmcnt(0)")
                for mt in range(MT):
                    for nt in range(NT):
                        A = vr(vFA+(st*MT+mt)*4,4); B = vr(vFB+(st*NT+nt)*4,4)
                        acc = vr(vAcc+(mt*NT+nt)*16,16)
                        if swap:
                            a(f"v_mfma_f32_32x32x16_bf16 {acc}, {B}, {A}, {acc}")
                        else:
                            a(f"v_mfma_f32_32x32x16_bf16 {acc}, {A}, {B}, {acc}")
            if c < 7:
                a(f"s_waitcnt vmcnt({(issued-c-2)*(XP+WP)})")
                lstore(c+1)
                a("s_waitcnt lgkmcnt(0)\ns_barrier")
        a("s_nop 15\ns_nop 3")
    if kind == 'qkv':
        Lv = a.newlabel("Lv"); Le = a.newlabel("Le")
        a(f"s_cmp_ge_u32 s25, 8\ns_cbranch_scc1 {Lv}")
        mainloop(True)
        a(f"""
        v_and_b32 {vr(vT)}, 31, v1
        s_lshl_b32 s29, s24, 7
        s_mul_i32 s30, s28, 64
        s_add_u32 s29, s29, s30
        v_add_u32 {vr(vT)}, s29, {vr(vT)}
        v_lshlrev_b32 {vr(vT)}, 5, {vr(vT)}
        v_lshrrev_b32 {vr(vT+1)}, 5, v1
        v_lshl_add_u32 {vr(vT)}, {vr(vT+1)}, 3, {vr(vT)}
        s_lshr_b32 s29, s25, 2
        s_lshl_b32 s29, s29, 21
        s_and_b32 s30, s25, 3
        s_lshl_b32 s30, s30, 3
        s_lshl_b32 s31, s27, 2
        s_add_u32 s30, s30, s31
        s_lshl_b32 s30, s30, 16
        s_add_u32 s29, s29, s30
        """)
        for mt in range(MT):
            for nt in range(NT):
                for q in range(4):
                    r = vAcc+(mt*NT+nt)*16+q*4
                    hoff = (nt*2 + (q>>1))*65536
                    a(f"s_add_u32 s33, s29, {hoff + mt*32*32}")
                    a(f"v_cvt_pk_bf16_f32 {vr(vSX)}, {vr(r)}, {vr(r+1)}")
                    a(f"v_cvt_pk_bf16_f32 {vr(vSX+1)}, {vr(r+2)}, {vr(r+3)}")
                    a(f"buffer_store_dwordx2 {vr(vSX,2)}, {vr(vT)}, {sr(sWS,4)}, s33 offen offset:{(q&1)*16}")
                    a("s_nop 1")
        a(f"s_branch {Le}")
        a.label(Lv)
        mainloop(False)
        a(f"""
        v_and_b32 {vr(vT)}, 31, v1
        v_lshlrev_b32 {vr(vT)}, 12, {vr(vT)}
        v_lshrrev_b32 {vr(vT+1)}, 5, v1
        v_lshl_add_u32 {vr(vT)}, {vr(vT+1)}, 3, {vr(vT)}
        s_sub_u32 s29, s25, 8
        s_lshl_b32 s29, s29, 7
        s_lshl_b32 s30, s27, 6
        s_add_u32 s29, s29, s30
        s_lshl_b32 s29, s29, 12
        s_lshl_b32 s30, s24, 8
        s_lshl_b32 s31, s28, 7
        s_add_u32 s30, s30, s31
        s_add_u32 s29, s29, s30
        s_add_u32 s29, s29, {WS_V}
        """)
        for mt in range(MT):
            for nt in range(NT):
                a(f"s_add_u32 s33, s29, {nt*32*4096 + mt*64}")
                for q in range(4):
                    r = vAcc+(mt*NT+nt)*16+q*4
                    a(f"v_cvt_pk_bf16_f32 {vr(vSX+2*(q&1))}, {vr(r)}, {vr(r+1)}")
                    a(f"v_cvt_pk_bf16_f32 {vr(vSX+2*(q&1)+1)}, {vr(r+2)}, {vr(r+3)}")
                    a(f"buffer_store_dwordx2 {vr(vSX+2*(q&1),2)}, {vr(vT)}, {sr(sWS,4)}, s33 offen offset:{q*16}")
                    a("s_nop 1")
        a.label(Le)
    else:
        a(f"""
        s_load_dwordx2 s[4:5], s[0:1], 0
        s_load_dwordx2 s[6:7], s[0:1], 80
        s_waitcnt lgkmcnt(0)
        s_mov_b32 s36, s4
        s_mov_b32 s37, s5
        s_mov_b32 s38, {2048*1024}
        s_mov_b32 s39, 0x00020000
        s_mov_b32 s40, s6
        s_mov_b32 s41, s7
        s_mov_b32 s42, {2048*1024}
        s_mov_b32 s43, 0x00020000
        v_and_b32 {vr(vE)}, 31, v1
        s_lshl_b32 s29, s25, 6
        s_lshl_b32 s30, s27, 5
        s_add_u32 s29, s29, s30
        v_add_u32 {vr(vE)}, s29, {vr(vE)}
        v_lshrrev_b32 {vr(vE+1)}, 5, v1
        s_lshl_b32 s30, s24, 6
        s_lshl_b32 s31, s28, 5
        s_add_u32 s30, s30, s31
        v_lshl_add_u32 {vr(vE+1)}, {vr(vE+1)}, 2, s30
        v_lshlrev_b32 {vr(vE+2)}, 12, {vr(vE)}
        v_lshl_add_u32 {vr(vE+2)}, {vr(vE+1)}, 1, {vr(vE+2)}
        v_lshlrev_b32 {vr(vE+3)}, 10, {vr(vE+1)}
        v_lshl_add_u32 {vr(vE+3)}, {vr(vE)}, 1, {vr(vE+3)}
        v_lshlrev_b32 {vr(vE+1)}, 2, {vr(vE+1)}
        s_mov_b32 s33, {WS_Y2T}
        s_mov_b32 s34, {WS_G}
        """)
        for q in range(4):
            a(f"buffer_load_dwordx2 {vr(vY+2*q,2)}, {vr(vE+2)}, {sr(sWS,4)}, s33 offen offset:{q*16}")
            a(f"buffer_load_dwordx4 {vr(vGt+4*q,4)}, {vr(vE+1)}, {sr(sWS,4)}, s34 offen offset:{q*32}")
        qreg = vQr
        for q in range(4):
            for i in range(4):
                a(f"buffer_load_ushort {vr(qreg+q*4+i)}, {vr(vE+3)}, {sr(36,4)}, 0 offen offset:{(8*q+i)*1024 % 4096}" if False else
                  f"s_mov_b32 s35, {(8*q+i)*1024}\nbuffer_load_ushort {vr(qreg+q*4+i)}, {vr(vE+3)}, {sr(36,4)}, s35 offen")
        mainloop(False)
        a("s_waitcnt vmcnt(0)")
        for q in range(4):
            for i in range(4):
                acc = vAcc + q*4 + i
                y = vY + 2*q + (i >> 1)
                t = vT
                if i & 1:
                    a(f"v_and_b32 {vr(t)}, 0xffff0000, {vr(y)}")
                else:
                    a(f"v_lshlrev_b32 {vr(t)}, 16, {vr(y)}")
                qq = qreg+q*4+i
                g = vGt+4*q+i
                a(f"""
                v_lshlrev_b32 {vr(qq)}, 16, {vr(qq)}
                v_mul_f32 {vr(t)}, {vr(qq)}, {vr(t)}
                v_cvt_pk_bf16_f32 {vr(t)}, {vr(t)}, {vr(t)}
                v_lshlrev_b32 {vr(t)}, 16, {vr(t)}
                v_mul_f32 {vr(t)}, {vr(g)}, {vr(t)}
                v_cvt_pk_bf16_f32 {vr(t)}, {vr(t)}, {vr(t)}
                v_lshlrev_b32 {vr(t)}, 16, {vr(t)}
                v_cvt_pk_bf16_f32 {vr(acc)}, {vr(acc)}, {vr(acc)}
                v_lshlrev_b32 {vr(acc)}, 16, {vr(acc)}
                v_sub_f32 {vr(g)}, 1.0, {vr(g)}
                v_cvt_pk_bf16_f32 {vr(g)}, {vr(g)}, {vr(g)}
                v_lshlrev_b32 {vr(g)}, 16, {vr(g)}
                v_mul_f32 {vr(acc)}, {vr(g)}, {vr(acc)}
                v_cvt_pk_bf16_f32 {vr(acc)}, {vr(acc)}, {vr(acc)}
                v_lshlrev_b32 {vr(acc)}, 16, {vr(acc)}
                v_add_f32 {vr(acc)}, {vr(t)}, {vr(acc)}
                v_cvt_pk_bf16_f32 {vr(acc)}, {vr(acc)}, {vr(acc)}
                s_mov_b32 s35, {(8*q+i)*1024}
                buffer_store_short {vr(acc)}, {vr(vE+3)}, {sr(40,4)}, s35 offen
                """)
    return vEnd, 2*BUF
```
